```python
import torch

def _softmax(x, axis=-1):
    return torch.softmax(x, dim=axis)

def _gelu(x):
    return torch.nn.functional.gelu(x, approximate='tanh')

def _silu(x):
    return torch.nn.functional.silu(x)

def _sigmoid(x):
    return torch.sigmoid(x)

def _layernorm(x, axis=-1, eps=1e-05):
    m = x.mean(dim=axis, keepdim=True)
    v = x.var(dim=axis, keepdim=True, unbiased=False)
    return (x - m) / torch.sqrt(v + eps)

def _scatter_add(tgt, idx, src, axis=0):
    return tgt.clone().index_add_(axis, idx, src)

def _segment_sum(src, seg, n):
    out = torch.zeros((n,) + src.shape[1:], dtype=src.dtype)
    return out.index_add_(0, seg, src)

def _pad(x, pw):
    flat = tuple((v for pair in reversed(pw) for v in pair))
    return torch.nn.functional.pad(x, flat)
kernel_name = 'adaLN_cond__mha_block_cached__geglu_ffn__decode'

def setup_inputs():

    _w = lambda a: (lambda t: t.to(torch.bfloat16) if t.is_floating_point() else t)(torch.as_tensor(a))

    def _A_setup():
        B, Sq, D = (1, 1, 512)
        H, Sk, Dh = (32, 65536, 128)
        return {'x': _w((lambda *s: torch.randn(*s, dtype=torch.bfloat16) * 0.1)(B, Sq, D)), 'k_cache': _w((lambda *s: torch.randn(*s, dtype=torch.bfloat16) * 0.8)(B, H, Sk, Dh)), 'v_cache': _w((lambda *s: torch.randn(*s, dtype=torch.bfloat16) * 1.6)(B, H, Sk, Dh)), 'wq': _w((lambda *s: torch.randn(*s, dtype=torch.bfloat16) * 0.8)(D, H * Dh) * D ** (-0.5)), 'wo': _w((lambda *s: torch.randn(*s, dtype=torch.bfloat16) * 1.6)(H * Dh, D) * (H * Dh) ** (-0.5))}
    _A_in = _A_setup()

    def _B_setup():
        B, S, D, F = (1, 1, 512, 1792)
        return {'x': _w((lambda *s: torch.randn(*s, dtype=torch.bfloat16) * 0.1)(B, S, D)), 'w_gate': _w((lambda *s: torch.randn(*s, dtype=torch.bfloat16) * 0.4)(D, F)), 'w_up': _w((lambda *s: torch.randn(*s, dtype=torch.bfloat16) * 0.4)(D, F)), 'w_down': _w((lambda *s: torch.randn(*s, dtype=torch.bfloat16) * 0.4)(F, D))}
    _B_in = _B_setup()
    return {'A_x': _A_in['x'], 'A_k_cache': _A_in['k_cache'], 'A_v_cache': _A_in['v_cache'], 'A_wq': _A_in['wq'], 'A_wo': _A_in['wo'], 'B_x': _B_in['x'], 'B_w_gate': _B_in['w_gate'], 'B_w_up': _B_in['w_up'], 'B_w_down': _B_in['w_down'], 'c': _w((lambda *s: torch.randn(*s, dtype=torch.bfloat16) * 0.4)(1, 512) * 8.0), 'w_mod': _w((lambda *s: torch.randn(*s, dtype=torch.bfloat16) * 0.4)(512, 6 * 512) * 512 ** (-0.5) * 8.0)}

def reference(A_x, A_k_cache, A_v_cache, A_wq, A_wo, B_x, B_w_gate, B_w_up, B_w_down, c, w_mod):

    def _A_ref(x, k_cache, v_cache, wq, wo):
        B, Sq, D = x.shape
        H, Dh = (32, 128)
        q = (lambda x, *d: x.permute(*d))((x @ wq).reshape(B, Sq, H, Dh), 0, 2, 1, 3)
        scores = torch.einsum('bhqd,bhkd->bhqk', q, k_cache) * Dh ** (-0.5)
        p = _softmax(scores, axis=-1)
        o = torch.einsum('bhqk,bhkd->bhqd', p, v_cache)
        return (lambda x, *d: x.permute(*d))(o, 0, 2, 1, 3).reshape(B, Sq, H * Dh) @ wo

    def _B_ref(x, w_gate, w_up, w_down):
        return _gelu(x @ w_gate) * (x @ w_up) @ w_down
    x = A_x
    mod = (_silu(c) @ w_mod).reshape(c.shape[0], 6, 1, -1)
    sa, ca, ga, sb, cb, gb = (mod[:, 0].clone(), mod[:, 1].clone(), mod[:, 2].clone(), mod[:, 3].clone(), mod[:, 4].clone(), mod[:, 5].clone())
    h = _layernorm(x, axis=-1) * (1 + ca) + sa
    x = x + ga * _A_ref(h, A_k_cache, A_v_cache, A_wq, A_wo)
    h = _layernorm(x, axis=-1) * (1 + cb) + sb
    x = x + gb * _B_ref(h, B_w_gate, B_w_up, B_w_down)
    return x
```

```python
import re
TRANS = ("v_exp_f32", "v_log_f32", "v_rcp_f32", "v_rsq_f32", "v_sqrt_f32")
def regs(tok, kind):
    tok = tok.strip().lstrip("-")
    m = re.fullmatch(kind + r"(\d+)", tok)
    if m: return {int(m.group(1))}
    m = re.fullmatch(kind + r"\[(\d+):(\d+)\]", tok)
    if m: return set(range(int(m.group(1)), int(m.group(2)) + 1))
    if kind == "s" and tok == "vcc": return {"vcc"}
    return set()
class I:
    def __init__(s, text):
        s.text = text
        t = text.split(";")[0].strip()
        s.label = t.endswith(":") or t.startswith(".") or not t
        s.vd = set(); s.vu = set(); s.sd = set(); s.su = set(); s.states = 0 if s.label else 1
        s.op = ""; s.valu = s.vmem = s.ds = s.dpp = s.widestore = s.m0w = s.ldsdma = False; s.srcC = set(); s.sdata = set()
        if s.label: return
        p = t.split(None, 1); s.op = p[0]
        ops = [x.strip() for x in re.split(r",(?![^\[]*\])", p[1])] if len(p) > 1 else []
        if ops:
            last = ops[-1].split(); ops[-1] = last[0]; mods = last[1:]
        else: mods = []
        if s.op == "s_nop": s.states = int(ops[0]) + 1; return
        if s.op.startswith("v_"):
            s.valu = True; s.dpp = "_dpp" in s.op
            s.vd = regs(ops[0], "v"); s.sd = regs(ops[0], "s")
            for o in ops[1:]: s.vu |= regs(o, "v"); s.su |= regs(o, "s")
            if "permlane" in s.op: s.vd |= regs(ops[1], "v"); s.vu |= regs(ops[0], "v")
            if s.dpp or s.op.startswith(("v_fmac", "v_dot2c")): s.vu |= s.vd
            if s.op.startswith("v_dot2_"): s.srcC = regs(ops[3], "v") - regs(ops[1], "v") - regs(ops[2], "v")
        elif s.op.startswith(("buffer_", "global_")):
            s.vmem = True; s.ldsdma = "lds" in mods
            for o in ops: s.su |= regs(o, "s")
            isload = "_load" in s.op and not s.ldsdma
            if isload:
                s.vd = regs(ops[0], "v")
                for o in ops[1:]: s.vu |= regs(o, "v")
            else:
                for o in ops: s.vu |= regs(o, "v")
                if "store_dwordx4" in s.op or "store_dwordx3" in s.op:
                    s.widestore = True; s.sdata = regs(ops[0] if s.op.startswith("buffer") else ops[1], "v")
        elif s.op.startswith("ds_"):
            s.ds = True
            if "read" in s.op or "rtn" in s.op:
                s.vd = regs(ops[0], "v")
                for o in ops[1:]: s.vu |= regs(o, "v")
            else:
                for o in ops: s.vu |= regs(o, "v")
        elif s.op.startswith("s_") and ops and ops[0] == "m0": s.m0w = True
def need(a, b):
    n = 0
    if a.valu:
        raw = a.vd & b.vu
        if b.valu and raw:
            if b.dpp or "permlane" in b.op: n = max(n, 2)
            if "readlane" in b.op or "readfirstlane" in b.op: n = max(n, 1)
            if a.op in TRANS: n = max(n, 1)
        if a.op.startswith("v_dot2"):
            if b.op == a.op:
                if raw - b.srcC: n = max(n, 3)
            elif raw or (a.vd & b.vd): n = max(n, 3)
        if a.sd & b.su:
            if b.valu: n = max(n, 4 if "lane" in b.op else 2)
            if b.vmem: n = max(n, 5)
    if a.widestore and (a.sdata & b.vd): n = max(n, 2)
    if a.m0w and b.ldsdma: n = max(n, 1)
    return n
class Asm:
    def __init__(s): s.L = []
    def __call__(s, text):
        for line in text.split("\n"):
            line = line.strip()
            if not line: continue
            b = I(line)
            if not b.label:
                d = 0; pad = 0
                for a in reversed(s.L):
                    if d >= 5: break
                    if not a.label: pad = max(pad, need(a, b) - d)
                    d += a.states
                if pad > 0: s.L.append(I(f"s_nop {pad-1}"))
            s.L.append(b)
    def text(s): return "\n".join(("" if i.label else "    ") + i.text for i in s.L) + "\n"
```

```python
import sys
from asmlib import Asm
NAME = "adaLN_cond__mha_block_cached__geglu_ffn__decode"
DPP = "row_mask:0xf bank_mask:0xf"
MODG, QG, PART, YP, DP, WSZ = 0x1000, 0x4000, 0x10000, 0x50000, 0x54000, 0x70000
LQ, LCNT, LRED, LX2, LA, LML, LPO, LBK = 0, 256, 512, 1536, 2560, 3072, 4096, 8192
def gen(U=4, S=2, F=8, stamp=False, BK=16, wflag="nt"):
    A = Asm()
    lds = LBK + 4 * 2 * BK * 1024
    hdr = open("cdna_kernels/" + NAME + ".s.ref").read().split("; Override launch")[0]
    pre = hdr + f"; @launch grid=(256,1,1) block=(512,1,1) lds={lds}\n"
    pre += f'.amdgcn_target "amdgcn-amd-amdhsa--gfx950"\n.text\n.globl {NAME}_kernel\n.p2align 8\n.type {NAME}_kernel,@function\n{NAME}_kernel:\n'
    uid = [0]
    def lab(p):
        uid[0] += 1; return f"L_{p}{uid[0]}"
    def ST(i):
        if stamp: A(f"s_memrealtime s[{70+2*i}:{71+2*i}]")
    def srd(d, base, size, off=None):
        if off is None: A(f"s_mov_b32 s{d}, s{base}\ns_mov_b32 s{d+1}, s{base+1}")
        else: A(f"s_add_u32 s{d}, s{base}, {off}\ns_addc_u32 s{d+1}, s{base+1}, 0")
        A(f"s_mov_b32 s{d+2}, {size}\ns_mov_b32 s{d+3}, 0x20000")
    def unpack(lo, hi, src):
        if hi == src: A(f"v_lshlrev_b32 v{lo}, 16, v{src}\nv_and_b32 v{hi}, s52, v{src}")
        else: A(f"v_and_b32 v{hi}, s52, v{src}\nv_lshlrev_b32 v{lo}, 16, v{src}")
    def rndn(rs):
        for a, b in zip(rs[::2], rs[1::2]): A(f"v_cvt_pk_bf16_f32 v{b}, v{a}, v{b}")
        for a, b in zip(rs[::2], rs[1::2]): unpack(a, b, b)
    def rnd1(a): A(f"v_cvt_pk_bf16_f32 v{a}, v{a}, v{a}\nv_lshlrev_b32 v{a}, 16, v{a}")
    def ror(op, rs, steps):
        for st in steps:
            for r in rs: A(f"{op}_dpp v{r}, v{r}, v{r} row_ror:{st} {DPP}")
    def quad(op, rs):
        for qp in ("[1,0,3,2]", "[2,3,0,1]"):
            for r in rs: A(f"{op}_dpp v{r}, v{r}, v{r} quad_perm:{qp} {DPP}")
    def xrows(op, pairs):
        for sw in ("v_permlane32_swap_b32", "v_permlane16_swap_b32"):
            for r, t in pairs: A(f"v_mov_b32 v{t}, v{r}")
            for r, t in pairs: A(f"{sw} v{r}, v{t}")
            for r, t in pairs: A(f"{op} v{r}, v{r}, v{t}")
    def halve(groups):
        for sw in ("v_permlane32_swap_b32", "v_permlane16_swap_b32"):
            for g in groups:
                for i in range(len(g) // 2): A(f"{sw} v{g[i]}, v{g[i+len(g)//2]}")
            for g in groups:
                for i in range(len(g) // 2): A(f"v_add_f32 v{g[i]}, v{g[i]}, v{g[i+len(g)//2]}")
            groups = [g[:len(g) // 2] for g in groups]
    def poll(loads, check, sleep=1):
        l = lab("poll"); d = lab("pdone")
        A(f"{l}:"); loads(); A("s_waitcnt vmcnt(0)"); check()
        A(f"s_cbranch_vccz {d}\ns_sub_u32 s59, s59, 1\ns_cbranch_scc1 L_end\ns_sleep {sleep}\ns_branch {l}\n{d}:")
    def chk_tags(rs, t):
        A(f"v_xor_b32 v{t}, s32, v{rs[0]}")
        for r in rs[1:]: A(f"v_xor_b32 v{r}, s32, v{r}")
        rr = rs[1:]
        while len(rr) >= 2: A(f"v_or3_b32 v{t}, v{t}, v{rr[0]}, v{rr[1]}"); rr = rr[2:]
        if rr: A(f"v_or_b32 v{t}, v{t}, v{rr[0]}")
        A(f"v_cmp_ne_u32 vcc, 0, v{t}")
    def chk_sent(rs, t):
        A(f"v_max_u32 v{t}, v{rs[0]}, v{rs[1]}"); rr = rs[2:]
        while len(rr) >= 2: A(f"v_max3_u32 v{t}, v{t}, v{rr[0]}, v{rr[1]}"); rr = rr[2:]
        A(f"v_cmp_eq_u32 vcc, -1, v{t}")
    def tile_load(wb, voff, stride):
        for i in range(8):
            if i: A(f"s_mov_b32 s48, {i*stride}")
            A(f"buffer_load_dwordx4 v[{wb+4*i}:{wb+4*i+3}], v{voff}, s[40:43], {'s48' if i else '0'} offen {wflag}")
    def tile_tr(wb, spare):
        M = []
        for p in range(4):
            row = []
            for j in range(4):
                a, b = wb + 8 * p + j, wb + 8 * p + 4 + j
                A(f"v_perm_b32 v{spare}, v{b}, v{a}, s53\nv_perm_b32 v{b}, v{b}, v{a}, s54")
                row += [spare, b]; spare = a
            M.append(row)
        return M
    def tile_dot(M, act, acc):
        for p in range(4):
            for c in range(8): A(f"v_dot2_f32_bf16 v{acc+c}, v{M[p][c]}, v{act+p}, {'v%d' % (acc+c) if p else '0'}")
    def arrive(cnt, n, skip):
        A(f"s_waitcnt lgkmcnt(0)\ns_mov_b64 exec, 1\nv_mov_b32 v24, 1\nv_mov_b32 v25, {LCNT+4*cnt}")
        A(f"ds_add_rtn_u32 v24, v25, v24\ns_waitcnt lgkmcnt(0)\nv_readfirstlane_b32 s35, v24\ns_mov_b64 exec, -1")
        A(f"s_cmp_lg_u32 s35, {n-1}\ns_cbranch_scc1 {skip}")
    def gemv_tail(acc, cnt, skip):
        halve([list(range(acc, acc + 8))]); ror("v_add_f32", [acc, acc + 1], [8, 4])
        A(f"ds_write_b64 v67, v[{acc}:{acc+1}] offset:{LRED}")
        arrive(cnt, 4, skip)
        A("v_and_b32 v24, 15, v0\nv_lshlrev_b32 v24, 3, v24")
        for k in range(4): A(f"ds_read_b64 v[{26+2*k}:{27+2*k}], v24 offset:{LRED+128*k}")
        A("s_waitcnt lgkmcnt(0)\nv_pk_add_f32 v[26:27], v[26:27], v[28:29]\nv_pk_add_f32 v[30:31], v[30:31], v[32:33]\nv_pk_add_f32 v[26:27], v[26:27], v[30:31]")
    def ln_stats(src, t, mo, ro):
        for j in range(4): unpack(t + 2 * j, t + 2 * j + 1, src + j)
        A(f"v_add_f32 v{mo}, v{t}, v{t+1}")
        for j in range(2, 8): A(f"v_add_f32 v{mo}, v{mo}, v{t+j}")
        ror("v_add_f32", [mo], [8, 4, 2, 1]); xrows("v_add_f32", [(mo, t + 8)])
        A(f"v_mul_f32 v{mo}, 0x3b000000, v{mo}")
        for j in range(8): A(f"v_sub_f32 v{t+j}, v{t+j}, v{mo}")
        A(f"v_mul_f32 v{ro}, v{t}, v{t}")
        for j in range(1, 8): A(f"v_fmac_f32 v{ro}, v{t+j}, v{t+j}")
        ror("v_add_f32", [ro], [8, 4, 2, 1]); xrows("v_add_f32", [(ro, t + 8)])
        A(f"v_mul_f32 v{ro}, 0x3b000000, v{ro}")
        rndn([mo, ro])
        A(f"v_add_f32 v{ro}, 0x3727c5ac, v{ro}"); rnd1(ro)
        A(f"v_sqrt_f32 v{ro}, v{ro}"); rnd1(ro)
        A(f"v_rcp_f32 v{ro}, v{ro}")
    def ln_norm(x, mo, ro):
        X = list(range(x, x + 8))
        for r in X: A(f"v_sub_f32 v{r}, v{r}, v{mo}")
        rndn(X)
        for r in X: A(f"v_mul_f32 v{r}, v{r}, v{ro}")
        rndn(X)
    def modulate(x, c1, s, out):
        for j in range(8): A(f"v_mul_f32 v{x+j}, v{x+j}, v{c1+j}")
        rndn(list(range(x, x + 8)))
        for j in range(8): A(f"v_add_f32 v{x+j}, v{x+j}, v{s+j}")
        for j in range(4): A(f"v_cvt_pk_bf16_f32 v{out+j}, v{x+2*j}, v{x+2*j+1}")
    def get_mod(sec, dst):
        A(f"s_mov_b32 s48, {MODG + sec*2048}")
        A(f"buffer_load_dwordx4 v[{dst}:{dst+3}], v68, s[36:39], s48 offen sc1\nbuffer_load_dwordx4 v[{dst+4}:{dst+7}], v68, s[36:39], s48 offen offset:16 sc1")
    def granule_unpack(d, plus1=False):
        for j in range(4): unpack(d + 2 * j, d + 2 * j + 1, d + 2 * j)
        if plus1:
            for j in range(8): A(f"v_add_f32 v{d+j}, 1.0, v{d+j}")
            rndn(list(range(d, d + 8)))
    def qk(kb, n):
        for t in range(4):
            for i in range(n): A(f"v_dot2_f32_bf16 v{20+i}, v{kb+4*i+t}, v{4+t}, {'v%d' % (20+i) if t else '0'}")
    def soft(n):
        X = list(range(20, 20 + n))
        ror("v_add_f32", X, [8, 4, 2, 1])
        rndn(X)
        for r in X: A(f"v_mul_f32 v{r}, s58, v{r}")
        rndn(X)
        if n == 4: A("v_max3_f32 v24, v20, v21, v22\nv_max3_f32 v24, v24, v23, v17")
        else: A("v_max3_f32 v24, v20, v21, v17")
        sk = lab("nors")
        A(f"v_cmp_gt_f32 vcc, v24, v17\ns_cbranch_vccz {sk}")
        A("v_mov_b32 v17, v24\nv_mul_f32 v25, s55, v24\nv_sub_f32 v24, v25, v18\nv_exp_f32 v24, v24\nv_mov_b32 v18, v25")
        for j in range(4): A(f"v_pk_mul_f32 v[{8+2*j}:{9+2*j}], v[{8+2*j}:{9+2*j}], v[24:25] op_sel_hi:[1,0]")
        A(f"v_mul_f32 v16, v16, v24\n{sk}:")
        for r in X: A(f"v_fma_f32 v{r}, v{r}, s51, v18")
        for r in X: A(f"v_exp_f32 v{r}, v{r}")
        for r in X: A(f"v_add_f32 v16, v16, v{r}")
    def pv(vb, n):
        for i in range(n):
            for j in range(4): unpack(24 + 2 * j, 25 + 2 * j, vb + 4 * i + j)
            e = 20 + (i & ~1)
            sel = "op_sel:[0,1,0] op_sel_hi:[1,1,1]" if i & 1 else "op_sel_hi:[1,0,1]"
            for j in range(4): A(f"v_pk_fma_f32 v[{8+2*j}:{9+2*j}], v[{24+2*j}:{25+2*j}], v[{e}:{e+1}], v[{8+2*j}:{9+2*j}] {sel}")
    def att_init():
        A(f"v_and_b32 v24, 15, v0\nv_lshlrev_b32 v24, 4, v24\nds_read_b128 v[4:7], v24 offset:{LQ}")
        for r in range(8, 17): A(f"v_mov_b32 v{r}, 0")
        A("v_mov_b32 v17, 0xf149f2ca\nv_mul_f32 v18, s55, v17\ns_waitcnt lgkmcnt(0)")

    A("s_cmp_ge_u32 s2, 256\ns_cbranch_scc1 L_exit")
    A("s_load_dwordx16 s[4:19], s[0:1], 0\ns_load_dwordx8 s[20:27], s[0:1], 64\ns_load_dwordx4 s[28:31], s[0:1], 96")
    ST(0)
    if stamp:
        for i in range(1, 9): A(f"s_mov_b64 s[{70+2*i}:{71+2*i}], 0")
    A(f"v_lshrrev_b32 v1, 6, v0\nv_and_b32 v0, 63, v0\nv_mov_b32 v4, 0\nv_readfirstlane_b32 s3, v1")
    A(f"v_mov_b32 v5, 0\nv_mov_b32 v6, 0\nv_mov_b32 v7, 0\nds_write_b128 v4, v[4:7] offset:{LCNT}")
    A("s_mov_b32 s51, 0x3fb8aa3b\ns_mov_b32 s55, 0xbfb8aa3b\ns_mov_b32 s52, 0xffff0000\ns_mov_b32 s58, 0x3db504f3")
    A("s_mov_b32 s59, 0x40000\ns_and_b32 s33, s3, 3\nv_lshlrev_b32 v1, 4, v0")
    A("s_waitcnt lgkmcnt(0)")
    srd(36, 30, WSZ)
    A("s_cmp_ge_u32 s3, 4\ns_cbranch_scc1 L_helper")
    A("s_lshl_b32 s35, s2, 21")
    srd(40, 6, 1 << 21, "s35"); srd(44, 8, 1 << 21, "s35")
    A(f"s_mul_i32 s48, s33, {BK*1024}\ns_lshl_b32 s50, s48, 1\ns_add_u32 s50, s50, {LBK}\ns_mov_b32 s49, {BK}")
    A("s_barrier")
    A("L_dma:")
    A(f"s_mov_b32 m0, s50\nbuffer_load_dwordx4 v1, s[40:43], s48 offen nt lds")
    A(f"s_add_u32 m0, s50, {BK*1024}\nbuffer_load_dwordx4 v1, s[44:47], s48 offen nt lds")
    A(f"s_add_u32 s48, s48, 1024\ns_add_u32 s50, s50, 1024\ns_waitcnt vmcnt({F-2})\ns_sub_u32 s49, s49, 1\ns_cmp_lg_u32 s49, 0\ns_cbranch_scc1 L_dma")
    A(f"s_mul_i32 s48, s33, {U*1024}\ns_add_u32 s48, s48, {4*BK*1024}")
    KB = lambda s: 32 + 8 * U * s
    VB = lambda s: 32 + 8 * U * s + 4 * U
    def ld(b, sr, pace=False):
        for i in range(U):
            A(f"buffer_load_dwordx4 v[{b+4*i}:{b+4*i+3}], v1, s[{sr}:{sr+3}], s48 offen offset:{i*1024} nt")
            if pace: A(f"s_waitcnt vmcnt({F-1})")
    for s in range(S):
        ld(KB(s), 40, True); ld(VB(s), 44, True); A(f"s_add_u32 s48, s48, {4*U*1024}")
    nit = (2048 - 4 * BK) // (4 * U)
    A(f"s_mov_b32 s49, {nit}\ns_waitcnt vmcnt({min(2*U*S, F-1)})")
    ST(1)
    A("s_barrier")
    ST(2)
    att_init()
    A("L_loop:")
    W = U + (S - 1) * 2 * U
    for s in range(S):
        A(f"s_waitcnt vmcnt({W})"); qk(KB(s), U); ld(KB(s), 40); soft(U)
        A(f"s_waitcnt vmcnt({W})"); pv(VB(s), U); ld(VB(s), 44)
        A(f"s_add_u32 s48, s48, {4*U*1024}\ns_sub_u32 s49, s49, 1\ns_cmp_lg_u32 s49, 0")
        A("s_cbranch_scc1 L_loop" if s == S - 1 else "s_cbranch_scc0 L_finish")
    A("L_finish:")
    ST(3)
    A("v_mov_b32 v26, v18"); xrows("v_min_f32", [(26, 24)])
    A("v_sub_f32 v24, v26, v18\nv_exp_f32 v24, v24")
    A(f"v_and_b32 v28, 15, v0\nv_lshrrev_b32 v29, 4, v0\nv_lshlrev_b32 v28, 5, v28\nv_lshl_add_u32 v28, v29, 3, v28\ns_lshl_b32 s35, s3, 9")
    for j in range(4): A(f"v_pk_mul_f32 v[{8+2*j}:{9+2*j}], v[{8+2*j}:{9+2*j}], v[24:25] op_sel_hi:[1,0]")
    A("v_mul_f32 v27, v16, v24\nv_add_u32 v28, s35, v28\ns_lshl_b32 s35, s3, 3\nv_mov_b32 v29, s35")
    halve([list(range(8, 16))]); xrows("v_add_f32", [(27, 24)])
    A(f"ds_write_b64 v28, v[8:9] offset:{LPO}\nds_write_b64 v29, v[26:27] offset:{LML}")
    arrive(1, 8, "L_notlast")
    A("s_waitcnt vmcnt(0)\nv_mov_b32 v24, 0\nv_lshlrev_b32 v25, 3, v0")
    for k in range(4): A(f"ds_read_b128 v[{32+4*k}:{35+4*k}], v24 offset:{LML+16*k}")
    for k in range(8): A(f"ds_read_b64 v[{48+2*k}:{49+2*k}], v25 offset:{LPO+512*k}")
    A(f"s_lshl_b32 s48, s2, 10\ns_add_u32 s48, s48, {PART}\ns_waitcnt lgkmcnt(8)")
    A("v_min3_f32 v26, v32, v34, v36\nv_min3_f32 v27, v38, v40, v42\nv_min3_f32 v26, v26, v44, v46\nv_min_f32 v26, v26, v27")
    for k in range(8): A(f"v_sub_f32 v{32+2*k}, v26, v{32+2*k}")
    for k in range(8): A(f"v_exp_f32 v{32+2*k}, v{32+2*k}")
    A("s_waitcnt lgkmcnt(0)\nv_mul_f32 v27, v32, v33\nv_pk_mul_f32 v[28:29], v[48:49], v[32:33] op_sel_hi:[1,0]")
    for k in range(1, 8):
        A(f"v_fmac_f32 v27, v{32+2*k}, v{33+2*k}\nv_pk_fma_f32 v[28:29], v[{48+2*k}:{49+2*k}], v[{32+2*k}:{33+2*k}], v[28:29] op_sel_hi:[1,0,1]")
    for r in (28, 29, 26, 27): A(f"v_min_u32 v{r}, -2, v{r}")
    A("buffer_store_dwordx2 v[28:29], v25, s[36:39], s48 offen sc1")
    A("s_mov_b64 exec, 1\nbuffer_store_dwordx2 v[26:27], off, s[36:39], s48 offset:512 sc1\ns_mov_b64 exec, -1")
    A("L_notlast:\ns_cmp_ge_u32 s3, 4\ns_cbranch_scc1 L_helper2")
    ST(4)
    A("s_branch L_end")
    A("L_helper:")
    A("buffer_load_dword v64, off, s[36:39], 0 sc1")
    A("s_and_b32 s34, s2, 0x70\ns_and_b32 s35, s2, 7\ns_lshl_b32 s35, s35, 1\ns_or_b32 s34, s34, s35\ns_bfe_u32 s35, s2, 0x10003\ns_or_b32 s34, s34, s35")
    A("s_mov_b32 s53, 0x05040100\ns_mov_b32 s54, 0x07060302")
    A("v_lshrrev_b32 v65, 2, v0\nv_lshlrev_b32 v65, 3, v65\ns_lshl_b32 s35, s33, 7\nv_add_u32 v65, s35, v65")
    A("v_and_b32 v66, 3, v0\nv_lshlrev_b32 v66, 4, v66\nv_lshrrev_b32 v67, 4, v0\nv_lshlrev_b32 v67, 3, v67\nv_lshl_add_u32 v67, v66, 1, v67\nv_add_u32 v67, s35, v67")
    A("v_lshlrev_b32 v68, 2, v65\nv_lshlrev_b32 v69, 1, v65\ns_lshl_b32 s49, s34, 6")
    A("s_cmp_ge_u32 s2, 128\ns_cbranch_scc1 L_qstage\ns_cmp_ge_u32 s2, 96\ns_cbranch_scc1 L_idle")
    A("global_load_dwordx4 v[72:75], v69, s[22:23]")
    srd(40, 24, 512 * 6144)
    A("s_movk_i32 s35, 6144\nv_mul_lo_u32 v70, s35, v65\nv_add3_u32 v70, v70, v66, s49")
    tile_load(128, 70, 6144)
    A("s_barrier\ns_waitcnt vmcnt(8)")
    for j in range(4): unpack(76 + 2 * j, 77 + 2 * j, 72 + j)
    for j in range(8): A(f"v_mul_f32 v{84+j}, s55, v{76+j}")
    for j in range(8): A(f"v_exp_f32 v{84+j}, v{84+j}")
    for j in range(8): A(f"v_add_f32 v{84+j}, 1.0, v{84+j}")
    for j in range(8): A(f"v_rcp_f32 v{84+j}, v{84+j}")
    for j in range(8): A(f"v_mul_f32 v{84+j}, v{76+j}, v{84+j}")
    for j in range(4): A(f"v_cvt_pk_bf16_f32 v{72+j}, v{84+2*j}, v{85+2*j}")
    A(f"v_readfirstlane_b32 s32, v64\ns_add_u32 s32, s32, 0x9e3779b9\ns_mov_b32 s50, {MODG}\ns_waitcnt vmcnt(0)")
    M = tile_tr(128, 127)
    A("s_branch L_pgemv")
    A("L_qstage:")
    A("global_load_dwordx4 v[72:75], v69, s[4:5]\nglobal_load_dwordx4 v[92:95], v1, s[4:5]")
    srd(40, 10, 512 * 8192)
    A("v_lshlrev_b32 v70, 13, v65\nv_add3_u32 v70, v70, v66, s49")
    tile_load(128, 70, 8192)
    A("s_barrier\ns_waitcnt vmcnt(8)")
    ln_stats(92, 96, 106, 107)
    for j in range(4): unpack(76 + 2 * j, 77 + 2 * j, 72 + j)
    ln_norm(76, 106, 107)
    A(f"v_readfirstlane_b32 s32, v64\ns_add_u32 s32, s32, 0x9e3779b9\ns_mov_b32 s50, {QG}\ns_waitcnt vmcnt(0)")
    tile_tr(128, 127)
    poll(lambda: (get_mod(0, 84), get_mod(1, 92)), lambda: chk_tags([85, 87, 89, 91, 93, 95, 97, 99], 100))
    ST(1)
    granule_unpack(84); granule_unpack(92, True)
    modulate(76, 92, 84, 72)
    A("L_pgemv:")
    tile_dot(M, 72, 8)
    gemv_tail(8, 0, "L_getq")
    A("v_cvt_pk_bf16_f32 v26, v26, v27\nv_mov_b32 v27, s32\ns_lshl_b32 s35, s34, 7\ns_add_u32 s50, s50, s35")
    A("s_mov_b64 exec, 0xffff\nbuffer_store_dwordx2 v[26:27], v24, s[36:39], s50 offen sc1\ns_mov_b64 exec, -1\ns_branch L_getq")
    A("L_idle:\ns_barrier\ns_waitcnt vmcnt(0)\nv_readfirstlane_b32 s32, v64\ns_add_u32 s32, s32, 0x9e3779b9")
    A("L_getq:")
    ST(2)
    A("s_cmp_lg_u32 s33, 0\ns_cbranch_scc1 L_b1")
    A(f"s_lshr_b32 s48, s2, 3\ns_lshl_b32 s48, s48, 9\ns_add_u32 s48, s48, {QG}\nv_lshlrev_b32 v24, 3, v0\nv_lshlrev_b32 v25, 2, v0")
    poll(lambda: A("buffer_load_dwordx2 v[26:27], v24, s[36:39], s48 offen sc1"), lambda: A("v_cmp_ne_u32 vcc, s32, v27"))
    A(f"ds_write_b32 v25, v26 offset:{LQ}\ns_waitcnt lgkmcnt(0)")
    A("L_b1:\ns_barrier")
    srd(64, 28, 256)
    A("s_cmp_lg_u32 s33, 0\ns_cbranch_scc1 L_noclr")
    for r in range(24, 28): A(f"v_mov_b32 v{r}, -1")
    A(f"s_lshl_b32 s48, s2, 10\ns_add_u32 s48, s48, {PART}\nbuffer_store_dwordx4 v[24:27], v1, s[36:39], s48 offen sc1")
    A(f"s_lshl_b32 s48, s2, 9\ns_add_u32 s48, s48, {YP}\nv_lshlrev_b32 v28, 3, v0\nbuffer_store_dwordx2 v[24:25], v28, s[36:39], s48 offen sc1")
    A("s_waitcnt vmcnt(0)\ns_mov_b64 exec, 1\nv_mov_b32 v28, 1\nbuffer_atomic_add v28, off, s[64:67], 0 sc1\ns_mov_b64 exec, -1")
    A("L_noclr:")
    A("s_cmp_ge_u32 s2, 128\ns_cbranch_scc1 L_ldwo\ns_cmp_ge_u32 s34, 56\ns_cbranch_scc1 L_bk")
    A("s_movk_i32 s35, 3584\nv_mul_lo_u32 v70, s35, v65\nv_add3_u32 v70, v70, v66, s49")
    srd(40, 16, 512 * 3584); tile_load(128, 70, 3584)
    srd(40, 18, 512 * 3584); tile_load(160, 70, 3584)
    A("s_lshl_b32 s35, s34, 15"); srd(40, 20, 32 * 1024, "s35")
    A("v_lshrrev_b32 v70, 4, v0\nv_lshlrev_b32 v70, 13, v70\nv_and_b32 v71, 15, v0\nv_lshl_add_u32 v70, v71, 4, v70\ns_lshl_b32 s35, s33, 8\nv_add_u32 v70, s35, v70")
    tile_load(192, 70, 1024)
    A("s_branch L_bk\nL_ldwo:")
    A("s_lshr_b32 s35, s34, 4\ns_lshl_b32 s35, s35, 19"); srd(40, 12, 512 * 1024, "s35")
    A("s_and_b32 s35, s49, 0x3ff\nv_lshlrev_b32 v70, 10, v65\nv_add3_u32 v70, v70, v66, s35")
    tile_load(128, 70, 1024)
    A("L_bk:")
    att_init()
    A(f"s_mul_i32 s35, s33, {2*BK*1024}\ns_add_u32 s35, s35, {LBK}\nv_add_u32 v2, s35, v1\ns_mov_b32 s49, {BK//4}")
    A("L_bkl:")
    for i in range(4): A(f"ds_read_b128 v[{32+4*i}:{35+4*i}], v2 offset:{i*1024}")
    for i in range(4): A(f"ds_read_b128 v[{48+4*i}:{51+4*i}], v2 offset:{BK*1024+i*1024}")
    A("v_add_u32 v2, 4096, v2\ns_waitcnt lgkmcnt(0)")
    qk(32, 4); soft(4); pv(48, 4)
    A("s_sub_u32 s49, s49, 1\ns_cmp_lg_u32 s49, 0\ns_cbranch_scc1 L_bkl\ns_branch L_finish")
    A("L_helper2:")
    A("s_cmp_ge_u32 s2, 128\ns_cbranch_scc1 L_h2a\ns_cmp_ge_u32 s34, 56\ns_cbranch_scc1 L_end\nL_h2a:")
    poll(lambda: A("buffer_load_dword v24, off, s[64:67], 0 sc1"), lambda: A("v_cmp_ne_u32 vcc, 0x100, v24"), 32)
    MW = tile_tr(128, 127)
    A("s_cmp_ge_u32 s2, 128\ns_cbranch_scc1 L_wait")
    MU = tile_tr(160, 126); MD = tile_tr(192, 125)
    A("global_load_dwordx4 v[72:75], v69, s[4:5]")
    A("s_lshl_b32 s35, s34, 2\ns_add_u32 s35, s35, s33\ns_lshl_b32 s50, s35, 4\ns_lshl_b32 s35, s35, 2\nv_lshrrev_b32 v116, 4, v0\nv_add_u32 v116, s35, v116")
    A("v_and_b32 v116, 0x1ff, v116\nv_lshrrev_b32 v117, 1, v116\nv_lshlrev_b32 v117, 3, v117")
    def l3():
        get_mod(2, 84); get_mod(3, 92); get_mod(4, 100)
        A(f"s_mov_b32 s48, {MODG+5*2048}\nbuffer_load_dwordx2 v[108:109], v117, s[36:39], s48 offen sc1")
    poll(l3, lambda: chk_tags(list(range(85, 110, 2)), 110), 16)
    granule_unpack(84); granule_unpack(92); granule_unpack(100, True)
    for j in range(4): unpack(76 + 2 * j, 77 + 2 * j, 72 + j)
    unpack(109, 108, 108)
    A("v_and_b32 v117, 1, v116\nv_cmp_eq_u32 vcc, 1, v117\nv_cndmask_b32 v108, v109, v108, vcc\nv_lshlrev_b32 v116, 1, v116")
    srd(60, 26, 1024)
    A(f"L_wait:\nv_mov_b32 v25, {LCNT+4}\nL_wl:\nds_read_b32 v24, v25\ns_waitcnt lgkmcnt(0)\nv_cmp_ne_u32 vcc, 8, v24\ns_cbranch_vccz L_wd")
    A("s_sub_u32 s59, s59, 1\ns_cbranch_scc1 L_end\ns_sleep 4\ns_branch L_wl\nL_wd:")
    ST(4)
    A("s_cmp_lt_u32 s2, 128\ns_cbranch_scc1 L_ffn")
    A(f"s_lshr_b32 s35, s34, 4\ns_lshl_b32 s35, s35, 2\ns_add_u32 s35, s35, s33\ns_lshl_b32 s35, s35, 13\ns_add_u32 s48, s35, {PART}")
    A("v_lshlrev_b32 v30, 7, v66\nv_and_b32 v31, 0x1ff, v68\nv_add_u32 v31, v31, v30")
    def la():
        for p in range(2):
            A(f"buffer_load_dwordx2 v[{48+2*p}:{49+2*p}], v30, s[36:39], s48 offen offset:{1024*p+512} sc1")
            for h in range(2): A(f"buffer_load_dwordx4 v[{32+8*p+4*h}:{35+8*p+4*h}], v31, s[36:39], s48 offen offset:{1024*p+16*h} sc1")
    poll(la, lambda: chk_sent(list(range(32, 52)), 24))
    ST(5)
    A("v_min_f32 v24, v48, v50"); quad("v_min_f32", [24])
    A("v_sub_f32 v48, v24, v48\nv_sub_f32 v50, v24, v50\nv_exp_f32 v48, v48\nv_exp_f32 v50, v50")
    A("v_mul_f32 v24, v48, v49\nv_fmac_f32 v24, v50, v51")
    for j in range(4): A(f"v_pk_mul_f32 v[{32+2*j}:{33+2*j}], v[{32+2*j}:{33+2*j}], v[48:49] op_sel_hi:[1,0]")
    for j in range(4): A(f"v_pk_fma_f32 v[{32+2*j}:{33+2*j}], v[{40+2*j}:{41+2*j}], v[50:51], v[{32+2*j}:{33+2*j}] op_sel_hi:[1,0,1]")
    quad("v_add_f32", [24] + list(range(32, 40)))
    A("v_rcp_f32 v24, v24")
    for j in range(4): A(f"v_pk_mul_f32 v[{32+2*j}:{33+2*j}], v[{32+2*j}:{33+2*j}], v[24:25] op_sel_hi:[1,0]")
    for j in range(4): A(f"v_cvt_pk_bf16_f32 v{72+j}, v{32+2*j}, v{33+2*j}")
    tile_dot(MW, 72, 8)
    gemv_tail(8, 2, "L_end")
    A(f"v_min_u32 v26, -2, v26\nv_min_u32 v27, -2, v27\ns_lshl_b32 s48, s34, 7\ns_add_u32 s48, s48, {YP}")
    A("s_mov_b64 exec, 0xffff\nbuffer_store_dwordx2 v[26:27], v24, s[36:39], s48 offen sc1\ns_mov_b64 exec, -1")
    ST(6)
    A("s_branch L_end")
    A(f"L_ffn:\ns_mov_b32 s48, {YP}\nv_lshl_add_u32 v31, v66, 8, v68")
    def lb():
        for p in range(2):
            for h in range(2): A(f"buffer_load_dwordx4 v[{32+8*p+4*h}:{35+8*p+4*h}], v31, s[36:39], s48 offen offset:{2048*p+16*h} sc1")
    poll(lb, lambda: chk_sent(list(range(32, 48)), 24))
    ST(5)
    Y = list(range(32, 40))
    for j in range(4): A(f"v_pk_add_f32 v[{32+2*j}:{33+2*j}], v[{32+2*j}:{33+2*j}], v[{40+2*j}:{41+2*j}]")
    quad("v_add_f32", Y); rndn(Y)
    modulate(32, 84, 76, 72)
    A(f"ds_write_b128 v69, v[72:75] offset:{LX2}")
    for j in range(4): unpack(76 + 2 * j, 77 + 2 * j, 72 + j)
    A(f"s_waitcnt lgkmcnt(0)\ns_barrier\nds_read_b128 v[32:35], v1 offset:{LX2}\nds_read_u16 v109, v116 offset:{LX2}\ns_waitcnt lgkmcnt(0)")
    ln_stats(32, 36, 46, 47)
    ln_norm(76, 46, 47)
    modulate(76, 100, 92, 72)
    tile_dot(MW, 72, 8); tile_dot(MU, 72, 16)
    halve([list(range(8, 16)), list(range(16, 24))]); ror("v_add_f32", [8, 9, 16, 17], [8, 4])
    A(f"ds_write_b64 v67, v[8:9] offset:{LRED}\nds_write_b64 v67, v[16:17] offset:{LRED+512}")
    A("v_and_b32 v24, 31, v0\nv_lshlrev_b32 v25, 2, v24\ns_lshl_b32 s35, s33, 6\nv_lshl_add_u32 v24, v24, 1, s35")
    A("v_lshrrev_b32 v26, 4, v0\nv_lshl_add_u32 v26, v26, 4, s35")
    A("s_waitcnt lgkmcnt(0)\ns_barrier")
    for k in range(4): A(f"ds_read2_b32 v[{32+2*k}:{33+2*k}], v25 offset0:{(LRED+128*k)//4} offset1:{(LRED+128*k+512)//4}" if (LRED+128*k+512)//4 < 256 else f"ds_read_b32 v{32+2*k}, v25 offset:{LRED+128*k}\nds_read_b32 v{33+2*k}, v25 offset:{LRED+128*k+512}")
    A("s_waitcnt lgkmcnt(0)\nv_pk_add_f32 v[32:33], v[32:33], v[34:35]\nv_pk_add_f32 v[36:37], v[36:37], v[38:39]\nv_pk_add_f32 v[32:33], v[32:33], v[36:37]")
    rndn([32, 33])
    A("v_mul_f32 v34, v32, v32\nv_mul_f32 v34, 0x3d372713, v34\nv_fma_f32 v34, v34, v32, v32\nv_mul_f32 v34, 0xc0135761, v34")
    A("v_exp_f32 v34, v34\nv_add_f32 v34, 1.0, v34\nv_rcp_f32 v34, v34\nv_mul_f32 v34, v34, v32"); rnd1(34)
    A(f"v_mul_f32 v34, v34, v33\nv_cvt_pk_bf16_f32 v34, v34, v34\nds_write_b16 v24, v34 offset:{LA}\ns_waitcnt lgkmcnt(0)\nds_read_b128 v[72:75], v26 offset:{LA}")
    A(f"s_lshl_b32 s48, s34, 11\ns_lshl_b32 s35, s33, 9\ns_add_u32 s48, s48, s35\ns_add_u32 s48, s48, {DP}")
    A("v_and_b32 v28, 15, v0\nv_lshrrev_b32 v29, 4, v0\nv_lshlrev_b32 v28, 5, v28\nv_lshl_add_u32 v28, v29, 3, v28\ns_waitcnt lgkmcnt(0)")
    tile_dot(MD, 72, 8)
    halve([list(range(8, 16))])
    A("v_min_u32 v8, -2, v8\nv_min_u32 v9, -2, v9\nbuffer_store_dwordx2 v[8:9], v28, s[36:39], s48 offen sc1")
    ST(6)
    A(f"s_cmp_ge_u32 s34, 32\ns_cbranch_scc1 L_end\ns_add_u32 s48, s50, {DP}\nv_lshlrev_b32 v31, 11, v0")
    poll(lambda: A("buffer_load_dwordx4 v[32:35], v31, s[36:39], s48 offen sc1"), lambda: chk_sent([32, 33, 34, 35], 24))
    ST(7)
    halve([[32, 33, 34, 35]]); ror("v_add_f32", [32], [8, 4, 2, 1]); rnd1(32)
    A("v_mul_f32 v32, v32, v108"); rnd1(32)
    A("v_lshlrev_b32 v109, 16, v109\nv_add_f32 v32, v32, v109\nv_cvt_pk_bf16_f32 v32, v32, v32")
    A("s_mov_b32 exec_lo, 0x10001\ns_mov_b32 exec_hi, 0x10001\nbuffer_store_short v32, v116, s[60:63], 0 offen")
    A("s_or_b32 s35, s2, s33\ns_cbranch_scc1 L_end\ns_mov_b64 exec, 1\nv_mov_b32 v24, s32\nbuffer_store_dword v24, off, s[36:39], 0 sc1")
    A("L_end:")
    if stamp:
        ST(8)
        A("s_mov_b64 exec, 1\ns_add_u32 s30, s30, 0x8000000\ns_addc_u32 s31, s31, 0\ns_lshl_b32 s35, s2, 3\ns_add_u32 s35, s35, s3\ns_lshl_b32 s35, s35, 7\nv_mov_b32 v3, s35\ns_waitcnt lgkmcnt(0)")
        for i in range(9): A(f"v_mov_b32 v4, s{70+2*i}\nv_mov_b32 v5, s{71+2*i}\nglobal_store_dwordx2 v3, v[4:5], s[30:31] offset:{8*i}")
    A("L_exit:\ns_endpgm")
    post = f""".section .rodata,"a"
.p2align 6
.amdhsa_kernel {NAME}_kernel
  .amdhsa_next_free_vgpr 256
  .amdhsa_next_free_sgpr 102
  .amdhsa_accum_offset 256
  .amdhsa_group_segment_fixed_size 0
  .amdhsa_kernarg_size 112
  .amdhsa_user_sgpr_count 2
  .amdhsa_user_sgpr_kernarg_segment_ptr 1
  .amdhsa_system_sgpr_workgroup_id_x 1
  .amdhsa_float_denorm_mode_32 3
.end_amdhsa_kernel
"""
    return pre + A.text() + post
if __name__ == "__main__":
    out = sys.argv[1]
    kw = {}
    for a in sys.argv[2:]:
        k, v = a.split("=")
        kw[k] = int(v) if v.lstrip("-").isdigit() else v
    open(out, "w").write(gen(**kw))
```

```python
import sys
from asmlib import Asm
NAME = "adaLN_cond__mha_block_cached__geglu_ffn__decode"
DPP = "row_mask:0xf bank_mask:0xf"
MODG, QG, PART, YP, DP, WSZ = 0x1000, 0x4000, 0x10000, 0x50000, 0x54000, 0x70000
LCNT, LPROD, LFLAG, LCONS, LRED, LX2, LA, LML, LPO, LBK = 0, 16, 24, 32, 512, 1536, 2560, 3072, 4096, 8192
TK = 0x8000
def gen(N=21, NS=19, nst=480, G=4, LK=4, stamp=False, wflag="nt", x=0, ev0=24, evd=24, psl=1, qsl=1):
    A = Asm()
    lds = LBK + NS * 8192
    hdr = open("cdna_kernels/" + NAME + ".s.ref").read().split("; Override launch")[0]
    pre = hdr + f"; @launch grid=(256,1,1) block=(320,1,1) lds={lds}\n"
    pre += f'.amdgcn_target "amdgcn-amd-amdhsa--gfx950"\n.text\n.globl {NAME}_kernel\n.p2align 8\n.type {NAME}_kernel,@function\n{NAME}_kernel:\n'
    uid = [0]
    def lab(p):
        uid[0] += 1; return f"L_{p}{uid[0]}"
    def ST(i):
        if stamp: A(f"s_memrealtime s[{70+2*i}:{71+2*i}]")
    def srd(d, base, size, off=None):
        if off is None: A(f"s_mov_b32 s{d}, s{base}\ns_mov_b32 s{d+1}, s{base+1}")
        else: A(f"s_add_u32 s{d}, s{base}, {off}\ns_addc_u32 s{d+1}, s{base+1}, 0")
        A(f"s_mov_b32 s{d+2}, {size}\ns_mov_b32 s{d+3}, 0x20000")
    def unpack(lo, hi, src):
        if hi == src: A(f"v_lshlrev_b32 v{lo}, 16, v{src}\nv_and_b32 v{hi}, s52, v{src}")
        else: A(f"v_and_b32 v{hi}, s52, v{src}\nv_lshlrev_b32 v{lo}, 16, v{src}")
    def rndn(rs):
        for a, b in zip(rs[::2], rs[1::2]): A(f"v_cvt_pk_bf16_f32 v{b}, v{a}, v{b}")
        for a, b in zip(rs[::2], rs[1::2]): unpack(a, b, b)
    def rnd1(a): A(f"v_cvt_pk_bf16_f32 v{a}, v{a}, v{a}\nv_lshlrev_b32 v{a}, 16, v{a}")
    def ror(op, rs, steps):
        for st in steps:
            for r in rs: A(f"{op}_dpp v{r}, v{r}, v{r} row_ror:{st} {DPP}")
    def quad(op, rs):
        for qp in ("[1,0,3,2]", "[2,3,0,1]"):
            for r in rs: A(f"{op}_dpp v{r}, v{r}, v{r} quad_perm:{qp} {DPP}")
    def xrows(op, pairs):
        for sw in ("v_permlane32_swap_b32", "v_permlane16_swap_b32"):
            for r, t in pairs: A(f"v_mov_b32 v{t}, v{r}")
            for r, t in pairs: A(f"{sw} v{r}, v{t}")
            for r, t in pairs: A(f"{op} v{r}, v{r}, v{t}")
    def halve(groups):
        for sw in ("v_permlane32_swap_b32", "v_permlane16_swap_b32"):
            for g in groups:
                for i in range(len(g) // 2): A(f"{sw} v{g[i]}, v{g[i+len(g)//2]}")
            for g in groups:
                for i in range(len(g) // 2): A(f"v_add_f32 v{g[i]}, v{g[i]}, v{g[i+len(g)//2]}")
            groups = [g[:len(g) // 2] for g in groups]
    def poll(loads, check, sleep=1):
        l = lab("poll"); d = lab("pdone")
        A(f"{l}:"); loads(); A("s_waitcnt vmcnt(0)"); check()
        A(f"s_cbranch_vccz {d}\ns_sub_u32 s59, s59, 1\ns_cbranch_scc1 L_end\ns_sleep {sleep}\ns_branch {l}\n{d}:")
    def chk_tags(rs, t):
        A(f"v_xor_b32 v{t}, s32, v{rs[0]}")
        for r in rs[1:]: A(f"v_xor_b32 v{r}, s32, v{r}")
        rr = rs[1:]
        while len(rr) >= 2: A(f"v_or3_b32 v{t}, v{t}, v{rr[0]}, v{rr[1]}"); rr = rr[2:]
        if rr: A(f"v_or_b32 v{t}, v{t}, v{rr[0]}")
        A(f"v_cmp_ne_u32 vcc, 0, v{t}")
    def chk_sent(rs, t):
        A(f"v_max_u32 v{t}, v{rs[0]}, v{rs[1]}"); rr = rs[2:]
        while len(rr) >= 2: A(f"v_max3_u32 v{t}, v{t}, v{rr[0]}, v{rr[1]}"); rr = rr[2:]
        A(f"v_cmp_eq_u32 vcc, -1, v{t}")
    def tile_load(wb, voff, stride):
        if x & 2 and stride < 6000: return
        for i in range(8):
            if i: A(f"s_mov_b32 s48, {i*stride}")
            A(f"buffer_load_dwordx4 v[{wb+4*i}:{wb+4*i+3}], v{voff}, s[40:43], {'s48' if i else '0'} offen {wflag}")
    def tile_tr(wb, spare):
        M = []
        for p in range(4):
            row = []
            for j in range(4):
                a, b = wb + 8 * p + j, wb + 8 * p + 4 + j
                A(f"v_perm_b32 v{spare}, v{b}, v{a}, s53\nv_perm_b32 v{b}, v{b}, v{a}, s54")
                row += [spare, b]; spare = a
            M.append(row)
        return M
    def tile_dot(M, act, acc):
        for p in range(4):
            for c in range(8): A(f"v_dot2_f32_bf16 v{acc+c}, v{M[p][c]}, v{act+p}, {'v%d' % (acc+c) if p else '0'}")
    def arrive(cnt, n, skip):
        A(f"s_waitcnt lgkmcnt(0)\ns_mov_b64 exec, 1\nv_mov_b32 v24, 1\nv_mov_b32 v25, {LCNT+4*cnt}")
        A(f"ds_add_rtn_u32 v24, v25, v24\ns_waitcnt lgkmcnt(0)\nv_readfirstlane_b32 s35, v24\ns_mov_b64 exec, -1")
        A(f"s_cmp_lg_u32 s35, {n-1}\ns_cbranch_scc1 {skip}")
    def gemv_tail(acc, cnt, skip):
        halve([list(range(acc, acc + 8))]); ror("v_add_f32", [acc, acc + 1], [8, 4])
        A(f"ds_write_b64 v67, v[{acc}:{acc+1}] offset:{LRED}")
        arrive(cnt, 4, skip)
        A("v_and_b32 v24, 15, v0\nv_lshlrev_b32 v24, 3, v24")
        for k in range(4): A(f"ds_read_b64 v[{26+2*k}:{27+2*k}], v24 offset:{LRED+128*k}")
        A("s_waitcnt lgkmcnt(0)\nv_pk_add_f32 v[26:27], v[26:27], v[28:29]\nv_pk_add_f32 v[30:31], v[30:31], v[32:33]\nv_pk_add_f32 v[26:27], v[26:27], v[30:31]")
    def ln_stats(src, t, mo, ro):
        for j in range(4): unpack(t + 2 * j, t + 2 * j + 1, src + j)
        A(f"v_add_f32 v{mo}, v{t}, v{t+1}")
        for j in range(2, 8): A(f"v_add_f32 v{mo}, v{mo}, v{t+j}")
        ror("v_add_f32", [mo], [8, 4, 2, 1]); xrows("v_add_f32", [(mo, t + 8)])
        A(f"v_mul_f32 v{mo}, 0x3b000000, v{mo}")
        for j in range(8): A(f"v_sub_f32 v{t+j}, v{t+j}, v{mo}")
        A(f"v_mul_f32 v{ro}, v{t}, v{t}")
        for j in range(1, 8): A(f"v_fmac_f32 v{ro}, v{t+j}, v{t+j}")
        ror("v_add_f32", [ro], [8, 4, 2, 1]); xrows("v_add_f32", [(ro, t + 8)])
        A(f"v_mul_f32 v{ro}, 0x3b000000, v{ro}")
        rndn([mo, ro])
        A(f"v_add_f32 v{ro}, 0x3727c5ac, v{ro}"); rnd1(ro)
        A(f"v_sqrt_f32 v{ro}, v{ro}"); rnd1(ro)
        A(f"v_rcp_f32 v{ro}, v{ro}")
    def ln_norm(x, mo, ro):
        X = list(range(x, x + 8))
        for r in X: A(f"v_sub_f32 v{r}, v{r}, v{mo}")
        rndn(X)
        for r in X: A(f"v_mul_f32 v{r}, v{r}, v{ro}")
        rndn(X)
    def modulate(x, c1, s, out):
        for j in range(8): A(f"v_mul_f32 v{x+j}, v{x+j}, v{c1+j}")
        rndn(list(range(x, x + 8)))
        for j in range(8): A(f"v_add_f32 v{x+j}, v{x+j}, v{s+j}")
        for j in range(4): A(f"v_cvt_pk_bf16_f32 v{out+j}, v{x+2*j}, v{x+2*j+1}")
    def get_mod(sec, dst):
        A(f"s_mov_b32 s48, {MODG + sec*2048}")
        A(f"buffer_load_dwordx4 v[{dst}:{dst+3}], v68, s[36:39], s48 offen sc1\nbuffer_load_dwordx4 v[{dst+4}:{dst+7}], v68, s[36:39], s48 offen offset:16 sc1")
    def granule_unpack(d, plus1=False):
        for j in range(4): unpack(d + 2 * j, d + 2 * j + 1, d + 2 * j)
        if plus1:
            for j in range(8): A(f"v_add_f32 v{d+j}, 1.0, v{d+j}")
            rndn(list(range(d, d + 8)))
    def qk(kb, n):
        for t in range(4):
            for i in range(n): A(f"v_dot2_f32_bf16 v{20+i}, v{kb+4*i+t}, v{4+t}, {'v%d' % (20+i) if t else '0'}")
    def soft(n):
        X = list(range(20, 20 + n))
        ror("v_add_f32", X, [8, 4, 2, 1])
        rndn(X)
        for r in X: A(f"v_mul_f32 v{r}, s58, v{r}")
        rndn(X)
        if n == 4: A("v_max3_f32 v24, v20, v21, v22\nv_max3_f32 v24, v24, v23, v17")
        else: A("v_max3_f32 v24, v20, v21, v17")
        sk = lab("nors")
        A(f"v_cmp_gt_f32 vcc, v24, v17\ns_cbranch_vccz {sk}")
        A("v_mov_b32 v17, v24\nv_mul_f32 v25, s55, v24\nv_sub_f32 v24, v25, v18\nv_exp_f32 v24, v24\nv_mov_b32 v18, v25")
        for j in range(4): A(f"v_pk_mul_f32 v[{8+2*j}:{9+2*j}], v[{8+2*j}:{9+2*j}], v[24:25] op_sel_hi:[1,0]")
        A(f"v_mul_f32 v16, v16, v24\n{sk}:")
        for r in X: A(f"v_fma_f32 v{r}, v{r}, s51, v18")
        for r in X: A(f"v_exp_f32 v{r}, v{r}")
        for r in X: A(f"v_add_f32 v16, v16, v{r}")
    def pv(vb, n):
        for i in range(n):
            for j in range(4): unpack(24 + 2 * j, 25 + 2 * j, vb + 4 * i + j)
            e = 20 + (i & ~1)
            sel = "op_sel:[0,1,0] op_sel_hi:[1,1,1]" if i & 1 else "op_sel_hi:[1,0,1]"
            for j in range(4): A(f"v_pk_fma_f32 v[{8+2*j}:{9+2*j}], v[{24+2*j}:{25+2*j}], v[{e}:{e+1}], v[{8+2*j}:{9+2*j}] {sel}")
    def att_init():
        for r in range(8, 17): A(f"v_mov_b32 v{r}, 0")
        A("v_mov_b32 v17, 0xf149f2ca\nv_mul_f32 v18, s55, v17")

    A("s_cmp_ge_u32 s2, 256\ns_cbranch_scc1 L_exit")
    A("s_load_dwordx16 s[4:19], s[0:1], 0\ns_load_dwordx8 s[20:27], s[0:1], 64\ns_load_dwordx4 s[28:31], s[0:1], 96")
    ST(0)
    if stamp:
        for i in range(1, 9): A(f"s_mov_b64 s[{70+2*i}:{71+2*i}], 0")
    A(f"v_lshrrev_b32 v1, 6, v0\nv_and_b32 v0, 63, v0\nv_mov_b32 v4, 0\nv_readfirstlane_b32 s3, v1")
    A(f"v_mov_b32 v5, 0\nv_mov_b32 v6, 0\nv_mov_b32 v7, 0\nv_mov_b32 v3, 0\nds_write_b128 v3, v[4:7] offset:{LCNT}\nds_write_b128 v3, v[4:7] offset:{LCONS}")
    A(f"v_bfrev_b32 v5, -2\nds_write_b128 v3, v[4:7] offset:{LPROD}")
    A("s_mov_b32 s59, 0x40000\nv_lshlrev_b32 v1, 4, v0\ns_lshr_b32 s91, s2, 3\ns_and_b32 s35, s2, 7")
    A("s_cmp_lg_u32 s3, 0\ns_waitcnt lgkmcnt(0)\ns_cbranch_scc1 L_cons")
    js = (N - 2) % 8
    A("s_setprio 3\ns_lshl_b32 s48, s35, 21\ns_lshl_b32 s35, s91, 24")
    srd(40, 6, 1 << 24, "s35"); srd(44, 8, 1 << 24, "s35")
    A(f"s_mov_b32 s49, {nst}\ns_mov_b32 s50, {LBK}\ns_mov_b32 s56, 0\ns_mov_b32 s57, {NS}\nv_mov_b32 v2, {(js + 2 - N)//8 - 1}")
    A(f"s_lshl_b32 s35, s91, 8\ns_add_u32 s35, s35, {TK}"); srd(36, 30, 256, "s35")
    if stamp: A("s_mov_b32 s93, 16")
    A("s_barrier")
    A(f"L_ll:\ns_cmp_ge_u32 s56, s57\ns_cbranch_scc1 L_lstall\ns_mov_b32 m0, s50")
    ngr = 8 * (512 - nst) // G
    over = {0: f"ds_read_b128 v[4:7], v3 offset:{LCONS}\ns_add_u32 s56, s56, 1",
            1: (f"s_cmp_eq_u32 s49, {LK}\ns_cbranch_scc1 L_tk\nL_tkr:" if ngr else ""),
            2: ("s_cmp_eq_u32 s56, s93\ns_cbranch_scc1 L_st\nL_str:" if stamp else ""),
            3: "s_add_u32 m0, s50, 4096\ns_add_u32 s50, s50, 8192",
            4: f"s_cmp_eq_u32 s50, {lds}\ns_cselect_b32 s50, {LBK}, s50",
            5: "s_waitcnt lgkmcnt(0)\nv_min3_u32 v4, v4, v5, v6\nv_min_u32 v4, v4, v7",
            6: f"v_readfirstlane_b32 s57, v4\ns_add_u32 s57, s57, {NS}",
            7: "s_add_u32 s48, s48, 4096\ns_sub_u32 s49, s49, 1\ns_cmp_lg_u32 s49, 0"}
    for j in range(8):
        A(f"buffer_load_dwordx4 v1, s[{40+4*(j//4)}:{43+4*(j//4)}], s48 offen offset:{(j%4)*1024} nt lds")
        if j == js: A("v_add_u32 v2, 1, v2")
        A(over.get(j, ""))
        A(f"s_waitcnt vmcnt({N-1})")
        if j == js: A(f"ds_write_b32 v3, v2 offset:{LPROD}")
    A("s_cbranch_scc1 L_ll")
    if ngr:
        assert LK * 8 - 2 >= N - 1 and LK <= G
        A(f"v_readfirstlane_b32 s48, v8\ns_cmp_ge_u32 s48, {ngr}\ns_cbranch_scc1 L_ldone")
        A(f"s_and_b32 s35, s48, 7\ns_lshr_b32 s48, s48, 3\ns_mul_i32 s48, s48, {G*4096}\ns_lshl_b32 s35, s35, 21\ns_add_u32 s48, s48, {nst*4096}\ns_add_u32 s48, s48, s35\ns_mov_b32 s49, {G}\ns_branch L_ll")
        A("L_tk:\nv_mov_b32 v8, 1\ns_mov_b64 exec, 1\nbuffer_atomic_add v8, off, s[36:39], 0 sc0 sc1\ns_mov_b64 exec, -1\ns_branch L_tkr")
    A("L_ldone:")
    ST(1)
    A("v_mov_b32 v5, s56")
    for k in range((N - 1) // 8, -1, -1):
        A(f"v_subrev_u32 v4, {k}, v5\ns_waitcnt vmcnt({8*k})\nds_write_b64 v3, v[4:5] offset:{LPROD}")
    A("s_waitcnt lgkmcnt(0)")
    ST(3)
    A("s_branch L_end")
    if stamp:
        A("L_st:")
        pts = [16, 64, 160, 448]
        for i, p in enumerate(pts):
            A(f"s_cmp_lg_u32 s56, {p}\ns_cbranch_scc1 L_st{i}"); ST(4 + i); A(f"s_mov_b32 s93, {pts[i+1] if i < 3 else -1}\nL_st{i}:")
        A("s_branch L_str")
    A(f"L_lstall:")
    if stamp: A("s_cmp_lg_u32 s74, 0\ns_cbranch_scc1 L_ls2"); ST(2); A("L_ls2:")
    A(f"ds_read_b128 v[4:7], v3 offset:{LCONS}\ns_sub_u32 s59, s59, 1\ns_cbranch_scc1 L_end\ns_waitcnt lgkmcnt(0)")
    A(f"v_min3_u32 v4, v4, v5, v6\nv_min_u32 v4, v4, v7\nv_readfirstlane_b32 s57, v4\ns_add_u32 s57, s57, {NS}\ns_branch L_ll")
    A("L_cons:")
    srd(36, 30, WSZ)
    A("buffer_load_dword v64, off, s[36:39], 0 sc1")
    A("s_sub_u32 s33, s3, 1\ns_lshr_b32 s48, s91, 1\ns_add_u32 s69, s35, s48\ns_and_b32 s69, s69, 7")
    A("s_lshl_b32 s48, s48, 2\ns_add_u32 s48, s48, s69\ns_lshl_b32 s48, s48, 1\ns_and_b32 s35, s91, 1\ns_or_b32 s34, s48, s35")
    A("s_sub_u32 s48, s69, 4\ns_lshl_b32 s48, s48, 5\ns_add_u32 s48, s48, s91\ns_cmp_ge_u32 s69, 4\ns_cselect_b32 s34, s48, s34")
    A("s_sub_u32 s68, 7, s69\ns_lshl_b32 s68, s68, 5\ns_add_u32 s68, s68, s91")
    A("s_mov_b32 s53, 0x05040100\ns_mov_b32 s54, 0x07060302\ns_mov_b32 s51, 0x3fb8aa3b\ns_mov_b32 s55, 0xbfb8aa3b\ns_mov_b32 s52, 0xffff0000\ns_mov_b32 s58, 0x3db504f3")
    A("v_lshrrev_b32 v65, 2, v0\nv_lshlrev_b32 v65, 3, v65\ns_lshl_b32 s35, s33, 7\nv_add_u32 v65, s35, v65")
    A("v_and_b32 v66, 3, v0\nv_lshlrev_b32 v66, 4, v66\nv_lshrrev_b32 v67, 4, v0\nv_lshlrev_b32 v67, 3, v67\nv_lshl_add_u32 v67, v66, 1, v67\nv_add_u32 v67, s35, v67")
    A("v_lshlrev_b32 v68, 2, v65\nv_lshlrev_b32 v69, 1, v65\ns_lshl_b32 s49, s34, 6")
    if x & 8: A("s_cmp_lg_u32 s69, 4\ns_cbranch_scc1 L_idle")
    A("s_cmp_lt_u32 s69, 4\ns_cbranch_scc1 L_qstage\ns_cmp_eq_u32 s69, 7\ns_cbranch_scc1 L_idle")
    A("s_cmp_lg_u32 s69, 4\ns_cbranch_scc1 L_noclr")
    for r in range(24, 28): A(f"v_mov_b32 v{r}, -1")
    A(f"s_lshl_b32 s35, s91, 2\ns_add_u32 s35, s35, s33\ns_lshl_b32 s48, s35, 10\ns_add_u32 s48, s48, {YP}\nbuffer_store_dwordx4 v[24:27], v1, s[36:39], s48 offen sc1")
    A(f"s_lshl_b32 s48, s35, 11\ns_add_u32 s48, s48, {PART}\ns_mov_b32 exec_hi, 15")
    A(f"buffer_store_dwordx4 v[24:27], v1, s[36:39], s48 offen sc1\nbuffer_store_dwordx4 v[24:27], v1, s[36:39], s48 offen offset:1024 sc1")
    A(f"s_lshl_b32 s48, s35, 6\ns_add_u32 s48, s48, {TK}\ns_mov_b64 exec, 1\nbuffer_store_dword v3, off, s[36:39], s48 sc1\ns_mov_b64 exec, -1")
    A("L_noclr:")
    A("global_load_dwordx4 v[72:75], v69, s[22:23]")
    srd(40, 24, 512 * 6144)
    A("s_movk_i32 s35, 6144\nv_mul_lo_u32 v70, s35, v65\nv_add3_u32 v70, v70, v66, s49")
    tile_load(128, 70, 6144)
    A("s_barrier\ns_waitcnt vmcnt(8)")
    for j in range(4): unpack(76 + 2 * j, 77 + 2 * j, 72 + j)
    A("s_mov_b32 s35, 0xb2a57060")
    for j in range(8): A(f"v_mul_f32 v{84+j}, s55, v{76+j}")
    for j in range(8): A(f"v_fma_f32 v{92+j}, v{76+j}, s55, -v{84+j}")
    for j in range(8): A(f"v_exp_f32 v{84+j}, v{84+j}")
    for j in range(8): A(f"v_fmac_f32 v{92+j}, s35, v{76+j}")
    for j in range(8): A(f"v_min_f32 v{84+j}, 0x7e000000, v{84+j}")
    for j in range(8): A(f"v_mul_f32 v{92+j}, 0x3f317218, v{92+j}")
    for j in range(8): A(f"v_fmac_f32 v{84+j}, v{92+j}, v{84+j}")
    for j in range(8): A(f"v_add_f32 v{84+j}, 1.0, v{84+j}")
    for j in range(8): A(f"v_rcp_f32 v{92+j}, v{84+j}")
    for j in range(8): A(f"v_mul_f32 v{100+j}, v{76+j}, v{92+j}")
    for j in range(8): A(f"v_fma_f32 v{84+j}, -v{100+j}, v{84+j}, v{76+j}")
    for j in range(8): A(f"v_fma_f32 v{84+j}, v{84+j}, v{92+j}, v{100+j}")
    for j in range(4): A(f"v_cvt_pk_bf16_f32 v{72+j}, v{84+2*j}, v{85+2*j}")
    A(f"v_readfirstlane_b32 s32, v64\ns_add_u32 s32, s32, 0x9e3779b9\ns_mov_b32 s50, {MODG}\ns_waitcnt vmcnt(0)")
    M = tile_tr(128, 127)
    A("s_branch L_pgemv")
    A("L_qstage:")
    A("global_load_dwordx4 v[72:75], v69, s[4:5]\nglobal_load_dwordx4 v[92:95], v1, s[4:5]")
    srd(40, 10, 512 * 8192)
    A("v_lshlrev_b32 v70, 13, v65\nv_add3_u32 v70, v70, v66, s49")
    tile_load(128, 70, 8192)
    A("s_barrier\ns_waitcnt vmcnt(8)")
    ln_stats(92, 96, 106, 107)
    for j in range(4): unpack(76 + 2 * j, 77 + 2 * j, 72 + j)
    ln_norm(76, 106, 107)
    A(f"v_readfirstlane_b32 s32, v64\ns_add_u32 s32, s32, 0x9e3779b9\ns_mov_b32 s50, {QG}\ns_waitcnt vmcnt(0)")
    tile_tr(128, 127)
    poll(lambda: (get_mod(0, 84), get_mod(1, 92)), lambda: chk_tags([85, 87, 89, 91, 93, 95, 97, 99], 100))
    ST(1)
    granule_unpack(84); granule_unpack(92, True)
    modulate(76, 92, 84, 72)
    A("L_pgemv:")
    tile_dot(M, 72, 8)
    gemv_tail(8, 0, "L_getq")
    A("v_cvt_pk_bf16_f32 v26, v26, v27\nv_mov_b32 v27, s32\ns_lshl_b32 s35, s34, 7\ns_add_u32 s50, s50, s35")
    A("s_mov_b64 exec, 0xffff\nbuffer_store_dwordx2 v[26:27], v24, s[36:39], s50 offen sc1\ns_mov_b64 exec, -1\ns_branch L_getq")
    A("L_idle:\ns_barrier\ns_waitcnt vmcnt(0)\nv_readfirstlane_b32 s32, v64\ns_add_u32 s32, s32, 0x9e3779b9")
    A("L_getq:")
    ST(2)
    srd(60, 26, 1024); srd(40, 12, 0); A("v_mov_b32 v116, 0\nv_mov_b32 v70, 0\ns_mov_b32 s90, 0")
    att_init()
    A(f"s_lshl_b32 s48, s91, 9\ns_add_u32 s48, s48, {QG}\nv_and_b32 v24, 15, v0\nv_lshlrev_b32 v24, 5, v24")
    A(f"s_mov_b32 s56, s33\ns_add_u32 s57, s33, {ev0}\ns_lshl_b32 s50, s33, 13\ns_add_u32 s50, s50, {LBK}\ns_mov_b32 s92, 0\ns_lshl_b32 s35, s33, 2\nv_mov_b32 v19, s35")
    def adv(): A(f"v_add_u32 v2, s50, v1\ns_add_u32 s50, s50, 32768\ns_cmp_ge_u32 s50, {lds}\ns_cselect_b32 s35, {NS*8192}, 0\ns_sub_u32 s50, s50, s35")
    def rd():
        for i in range(8 if not x & 4 else 0): A(f"ds_read_b128 v[{32+4*i}:{35+4*i}], v2 offset:{i*1024}")
        A("s_add_u32 s56, s56, 4\nv_mov_b32 v26, s56")
    adv()
    A(f"L_pw:\nds_read_b32 v25, v3 offset:{LPROD}\ns_sub_u32 s59, s59, 1\ns_cbranch_scc1 L_end\ns_waitcnt lgkmcnt(0)\nv_cmp_lt_i32 vcc, s56, v25\ns_cbranch_vccz L_pw")
    rd()
    A(f"s_waitcnt lgkmcnt(0)\nds_write_b32 v19, v26 offset:{LCONS}")
    if not x & 8: poll(lambda: A("buffer_load_dwordx4 v[72:75], v24, s[36:39], s48 offen sc1\nbuffer_load_dwordx4 v[76:79], v24, s[36:39], s48 offen offset:16 sc1"), lambda: chk_tags([73, 75, 77, 79], 25), qsl)
    for j in range(4): A(f"v_mov_b32 v{4+j}, v{72+2*j}")
    ST(3)
    A("s_branch L_comp")
    A("L_cl:\ns_cmp_eq_u32 s56, s57\ns_cbranch_scc1 L_event")
    adv()
    A(f"L_cw:\nds_read_b64 v[24:25], v3 offset:{LPROD}\ns_waitcnt lgkmcnt(0)\nv_cmp_lt_i32 vcc, s56, v24\ns_cbranch_vccnz L_go")
    A(f"v_cmp_ge_i32 vcc, s56, v25\ns_cbranch_vccnz L_finish\ns_sub_u32 s59, s59, 1\ns_cbranch_scc1 L_end\ns_sleep {psl}\ns_branch L_cw")
    A("L_go:")
    rd()
    A("s_waitcnt lgkmcnt(4)\nL_comp:")
    if not x & 1: qk(32, 4)
    A(f"s_waitcnt lgkmcnt(0)\nds_write_b32 v19, v26 offset:{LCONS}")
    if not x & 1: soft(4); pv(48, 4)
    A("s_branch L_cl")
    A(f"L_event:\ns_add_u32 s57, s57, {evd}\ns_add_u32 s92, s92, 1")
    for e in (2, 3, 4): A(f"s_cmp_eq_u32 s92, {e}\ns_cbranch_scc1 L_ev{e}")
    A("s_cmp_lt_u32 s69, 4\ns_cbranch_scc1 L_ldwo\ns_cmp_ge_u32 s68, 56\ns_cbranch_scc1 L_cl")
    A("s_movk_i32 s35, 3584\nv_mul_lo_u32 v70, s35, v65\ns_lshl_b32 s35, s68, 6\nv_add3_u32 v70, v70, v66, s35")
    srd(40, 16, 512 * 3584); tile_load(128, 70, 3584)
    A("s_branch L_cl\nL_ldwo:")
    A("s_lshr_b32 s35, s34, 4\ns_lshl_b32 s35, s35, 19"); srd(40, 12, 512 * 1024, "s35")
    A("s_and_b32 s35, s49, 0x3ff\nv_lshlrev_b32 v70, 10, v65\nv_add3_u32 v70, v70, v66, s35")
    tile_load(128, 70, 1024)
    A("s_branch L_cl")
    A("L_ev2:\ns_waitcnt vmcnt(0)")
    MW = tile_tr(128, 127)
    A("s_cmp_ge_u32 s68, 56\ns_cbranch_scc1 L_cl")
    srd(40, 18, 512 * 3584); tile_load(160, 70, 3584)
    A("s_branch L_cl")
    A("L_ev3:\ns_cmp_ge_u32 s68, 56\ns_cbranch_scc1 L_cl\ns_waitcnt vmcnt(0)")
    MU = tile_tr(160, 126)
    A("s_lshl_b32 s35, s68, 15"); srd(40, 20, 32 * 1024, "s35")
    A("v_lshrrev_b32 v70, 4, v0\nv_lshlrev_b32 v70, 13, v70\nv_and_b32 v71, 15, v0\nv_lshl_add_u32 v70, v71, 4, v70\ns_lshl_b32 s35, s33, 8\nv_add_u32 v70, s35, v70")
    tile_load(192, 70, 1024)
    A("s_branch L_cl")
    A("L_ev4:\ns_mov_b32 s57, -1")
    A("s_cmp_ge_u32 s68, 56\ns_cbranch_scc1 L_cl\ns_waitcnt vmcnt(0)")
    MD = tile_tr(192, 125)
    A("global_load_dwordx4 v[72:75], v69, s[4:5]")
    A("s_lshl_b32 s35, s68, 2\ns_add_u32 s35, s35, s33\ns_lshl_b32 s90, s35, 4\ns_lshl_b32 s35, s35, 2\nv_lshrrev_b32 v116, 4, v0\nv_add_u32 v116, s35, v116")
    A("v_and_b32 v116, 0x1ff, v116\nv_lshrrev_b32 v117, 1, v116\nv_lshlrev_b32 v117, 3, v117")
    def l3():
        get_mod(2, 84); get_mod(3, 92); get_mod(4, 100)
        A(f"s_mov_b32 s48, {MODG+5*2048}\nbuffer_load_dwordx2 v[108:109], v117, s[36:39], s48 offen sc1")
    if not x & 8: poll(l3, lambda: chk_tags(list(range(85, 110, 2)), 110), 8)
    granule_unpack(84); granule_unpack(92); granule_unpack(100, True)
    for j in range(4): unpack(76 + 2 * j, 77 + 2 * j, 72 + j)
    unpack(109, 108, 108)
    A("v_and_b32 v117, 1, v116\nv_cmp_eq_u32 vcc, 1, v117\nv_cndmask_b32 v108, v109, v108, vcc\nv_lshlrev_b32 v116, 1, v116\ns_branch L_cl")
    A("L_finish:")
    A("v_mov_b32 v26, v18"); xrows("v_min_f32", [(26, 24)])
    A("v_sub_f32 v24, v26, v18\nv_exp_f32 v24, v24")
    A(f"v_and_b32 v28, 15, v0\nv_lshrrev_b32 v29, 4, v0\nv_lshlrev_b32 v28, 5, v28\nv_lshl_add_u32 v28, v29, 3, v28\ns_lshl_b32 s35, s33, 9")
    for j in range(4): A(f"v_pk_mul_f32 v[{8+2*j}:{9+2*j}], v[{8+2*j}:{9+2*j}], v[24:25] op_sel_hi:[1,0]")
    A("v_mul_f32 v27, v16, v24\nv_add_u32 v28, s35, v28\nv_lshlrev_b32 v29, 1, v19")
    halve([list(range(8, 16))]); xrows("v_add_f32", [(27, 24)])
    A(f"ds_write_b64 v28, v[8:9] offset:{LPO}\nds_write_b64 v29, v[26:27] offset:{LML}")
    arrive(1, 4, "L_notlast")
    A("v_lshlrev_b32 v25, 3, v0")
    for k in range(2): A(f"ds_read_b128 v[{32+4*k}:{35+4*k}], v3 offset:{LML+16*k}")
    for k in range(4): A(f"ds_read_b64 v[{48+2*k}:{49+2*k}], v25 offset:{LPO+512*k}")
    A(f"s_lshl_b32 s48, s2, 10\ns_add_u32 s48, s48, {PART}\ns_waitcnt lgkmcnt(4)")
    A("v_min3_f32 v26, v32, v34, v36\nv_min_f32 v26, v26, v38")
    for k in range(4): A(f"v_sub_f32 v{32+2*k}, v26, v{32+2*k}")
    for k in range(4): A(f"v_exp_f32 v{32+2*k}, v{32+2*k}")
    A("s_waitcnt lgkmcnt(0)\nv_mul_f32 v27, v32, v33\nv_pk_mul_f32 v[28:29], v[48:49], v[32:33] op_sel_hi:[1,0]")
    for k in range(1, 4):
        A(f"v_fmac_f32 v27, v{32+2*k}, v{33+2*k}\nv_pk_fma_f32 v[28:29], v[{48+2*k}:{49+2*k}], v[{32+2*k}:{33+2*k}], v[28:29] op_sel_hi:[1,0,1]")
    for r in (28, 29, 26, 27): A(f"v_min_u32 v{r}, -2, v{r}")
    A("buffer_store_dwordx2 v[28:29], v25, s[36:39], s48 offen sc1")
    A("s_mov_b64 exec, 1\nbuffer_store_dwordx2 v[26:27], off, s[36:39], s48 offset:512 sc1\ns_mov_b64 exec, -1")
    A("L_notlast:")
    ST(4)
    A("s_cmp_lt_u32 s68, 56\ns_cbranch_scc1 L_ffn\ns_cmp_ge_u32 s69, 4\ns_cbranch_scc1 L_end")
    A(f"s_lshr_b32 s35, s34, 4\ns_lshl_b32 s35, s35, 2\ns_add_u32 s35, s35, s33\ns_lshl_b32 s35, s35, 13\ns_add_u32 s48, s35, {PART}")
    A("v_lshlrev_b32 v30, 7, v66\nv_and_b32 v31, 0x1ff, v68\nv_add_u32 v31, v31, v30")
    def la():
        for p in range(2):
            A(f"buffer_load_dwordx2 v[{48+2*p}:{49+2*p}], v30, s[36:39], s48 offen offset:{1024*p+512} sc1")
            for h in range(2): A(f"buffer_load_dwordx4 v[{32+8*p+4*h}:{35+8*p+4*h}], v31, s[36:39], s48 offen offset:{1024*p+16*h} sc1")
    poll(la, lambda: chk_sent(list(range(32, 52)), 24))
    ST(5)
    A("v_min_f32 v24, v48, v50"); quad("v_min_f32", [24])
    A("v_sub_f32 v48, v24, v48\nv_sub_f32 v50, v24, v50\nv_exp_f32 v48, v48\nv_exp_f32 v50, v50")
    A("v_mul_f32 v24, v48, v49\nv_fmac_f32 v24, v50, v51")
    for j in range(4): A(f"v_pk_mul_f32 v[{32+2*j}:{33+2*j}], v[{32+2*j}:{33+2*j}], v[48:49] op_sel_hi:[1,0]")
    for j in range(4): A(f"v_pk_fma_f32 v[{32+2*j}:{33+2*j}], v[{40+2*j}:{41+2*j}], v[50:51], v[{32+2*j}:{33+2*j}] op_sel_hi:[1,0,1]")
    quad("v_add_f32", [24] + list(range(32, 40)))
    A("v_rcp_f32 v24, v24")
    for j in range(4): A(f"v_pk_mul_f32 v[{32+2*j}:{33+2*j}], v[{32+2*j}:{33+2*j}], v[24:25] op_sel_hi:[1,0]")
    for j in range(4): A(f"v_cvt_pk_bf16_f32 v{72+j}, v{32+2*j}, v{33+2*j}")
    tile_dot(MW, 72, 8)
    gemv_tail(8, 2, "L_end")
    A(f"v_min_u32 v26, -2, v26\nv_min_u32 v27, -2, v27\ns_lshl_b32 s48, s34, 7\ns_add_u32 s48, s48, {YP}")
    A("s_mov_b64 exec, 0xffff\nbuffer_store_dwordx2 v[26:27], v24, s[36:39], s48 offen sc1\ns_mov_b64 exec, -1")
    ST(6)
    A("s_branch L_end")
    A(f"L_ffn:\ns_mov_b32 s48, {YP}\nv_lshl_add_u32 v31, v66, 8, v68")
    def lb():
        for p in range(2):
            for h in range(2): A(f"buffer_load_dwordx4 v[{32+8*p+4*h}:{35+8*p+4*h}], v31, s[36:39], s48 offen offset:{2048*p+16*h} sc1")
    poll(lb, lambda: chk_sent(list(range(32, 48)), 24))
    ST(5)
    Y = list(range(32, 40))
    for j in range(4): A(f"v_pk_add_f32 v[{32+2*j}:{33+2*j}], v[{32+2*j}:{33+2*j}], v[{40+2*j}:{41+2*j}]")
    quad("v_add_f32", Y); rndn(Y)
    modulate(32, 84, 76, 72)
    A(f"ds_write_b128 v69, v[72:75] offset:{LX2}")
    for j in range(4): unpack(76 + 2 * j, 77 + 2 * j, 72 + j)
    A(f"s_waitcnt lgkmcnt(0)\ns_barrier\nds_read_b128 v[32:35], v1 offset:{LX2}\nds_read_u16 v109, v116 offset:{LX2}\ns_waitcnt lgkmcnt(0)")
    ln_stats(32, 36, 46, 47)
    ln_norm(76, 46, 47)
    modulate(76, 100, 92, 72)
    tile_dot(MW, 72, 8); tile_dot(MU, 72, 16)
    halve([list(range(8, 16)), list(range(16, 24))]); ror("v_add_f32", [8, 9, 16, 17], [8, 4])
    A(f"ds_write_b64 v67, v[8:9] offset:{LRED}\nds_write_b64 v67, v[16:17] offset:{LRED+512}")
    A("v_and_b32 v24, 31, v0\nv_lshlrev_b32 v25, 2, v24\ns_lshl_b32 s35, s33, 6\nv_lshl_add_u32 v24, v24, 1, s35")
    A("v_lshrrev_b32 v26, 4, v0\nv_lshl_add_u32 v26, v26, 4, s35")
    A("s_waitcnt lgkmcnt(0)\ns_barrier")
    for k in range(4): A(f"ds_read2_b32 v[{32+2*k}:{33+2*k}], v25 offset0:{(LRED+128*k)//4} offset1:{(LRED+128*k+512)//4}" if (LRED+128*k+512)//4 < 256 else f"ds_read_b32 v{32+2*k}, v25 offset:{LRED+128*k}\nds_read_b32 v{33+2*k}, v25 offset:{LRED+128*k+512}")
    A("s_waitcnt lgkmcnt(0)\nv_pk_add_f32 v[32:33], v[32:33], v[34:35]\nv_pk_add_f32 v[36:37], v[36:37], v[38:39]\nv_pk_add_f32 v[32:33], v[32:33], v[36:37]")
    rndn([32, 33])
    A("v_mul_f32 v34, v32, v32\nv_mul_f32 v34, 0x3d372713, v34\nv_fma_f32 v34, v34, v32, v32\nv_mul_f32 v34, 0xc0135761, v34")
    A("v_exp_f32 v34, v34\nv_add_f32 v34, 1.0, v34\nv_rcp_f32 v34, v34\nv_mul_f32 v34, v34, v32"); rnd1(34)
    A(f"v_mul_f32 v34, v34, v33\nv_cvt_pk_bf16_f32 v34, v34, v34\nds_write_b16 v24, v34 offset:{LA}\ns_waitcnt lgkmcnt(0)\nds_read_b128 v[72:75], v26 offset:{LA}")
    A(f"s_lshl_b32 s48, s68, 11\ns_lshl_b32 s35, s33, 9\ns_add_u32 s48, s48, s35\ns_add_u32 s48, s48, {DP}")
    A("v_and_b32 v28, 15, v0\nv_lshrrev_b32 v29, 4, v0\nv_lshlrev_b32 v28, 5, v28\nv_lshl_add_u32 v28, v29, 3, v28\ns_waitcnt lgkmcnt(0)")
    tile_dot(MD, 72, 8)
    halve([list(range(8, 16))])
    A("v_min_u32 v8, -2, v8\nv_min_u32 v9, -2, v9\nbuffer_store_dwordx2 v[8:9], v28, s[36:39], s48 offen sc1")
    ST(6)
    A(f"s_cmp_ge_u32 s68, 32\ns_cbranch_scc1 L_end\ns_add_u32 s48, s90, {DP}\nv_lshlrev_b32 v31, 11, v0")
    poll(lambda: A("buffer_load_dwordx4 v[32:35], v31, s[36:39], s48 offen sc1"), lambda: chk_sent([32, 33, 34, 35], 24))
    ST(7)
    halve([[32, 33, 34, 35]]); ror("v_add_f32", [32], [8, 4, 2, 1]); rnd1(32)
    A("v_mul_f32 v32, v32, v108"); rnd1(32)
    A("v_lshlrev_b32 v109, 16, v109\nv_add_f32 v32, v32, v109\nv_cvt_pk_bf16_f32 v32, v32, v32")
    A("s_mov_b32 exec_lo, 0x10001\ns_mov_b32 exec_hi, 0x10001\nbuffer_store_short v32, v116, s[60:63], 0 offen")
    A("s_or_b32 s35, s68, s33\ns_cbranch_scc1 L_end\ns_mov_b64 exec, 1\nv_mov_b32 v24, s32\nbuffer_store_dword v24, off, s[36:39], 0 sc1")
    A("L_end:")
    if stamp:
        ST(8)
        A("s_mov_b64 exec, 1\ns_add_u32 s30, s30, 0x8000000\ns_addc_u32 s31, s31, 0\ns_lshl_b32 s35, s2, 3\ns_add_u32 s35, s35, s3\ns_lshl_b32 s35, s35, 7\nv_mov_b32 v3, s35\ns_waitcnt lgkmcnt(0)")
        for i in range(9): A(f"v_mov_b32 v4, s{70+2*i}\nv_mov_b32 v5, s{71+2*i}\nglobal_store_dwordx2 v3, v[4:5], s[30:31] offset:{8*i}")
    A("L_exit:\ns_endpgm")
    post = f""".section .rodata,"a"
.p2align 6
.amdhsa_kernel {NAME}_kernel
  .amdhsa_next_free_vgpr 256
  .amdhsa_next_free_sgpr 102
  .amdhsa_accum_offset 256
  .amdhsa_group_segment_fixed_size 0
  .amdhsa_kernarg_size 112
  .amdhsa_user_sgpr_count 2
  .amdhsa_user_sgpr_kernarg_segment_ptr 1
  .amdhsa_system_sgpr_workgroup_id_x 1
  .amdhsa_float_denorm_mode_32 3
.end_amdhsa_kernel
"""
    return pre + A.text() + post
if __name__ == "__main__":
    out = sys.argv[1]
    kw = {}
    for a in sys.argv[2:]:
        k, v = a.split("=")
        kw[k] = int(v) if v.lstrip("-").isdigit() else v
    open(out, "w").write(gen(**kw))
```

```python
import sys
from asmlib import Asm
NAME = "adaLN_cond__mha_block_cached__geglu_ffn__decode"
DPP = "row_mask:0xf bank_mask:0xf"
MODG, QG, PART, YP, DP, WSZ = 0x1000, 0x4000, 0x10000, 0x50000, 0x54000, 0x70000
LCNT, LPROD, LFLAG, LCONS, LRED, LX2, LA, LML, LPO, LBK = 0, 16, 24, 32, 512, 1536, 2560, 3072, 4096, 8192
TK = 0x8000
def gen(N=21, NS=19, nst=480, G=4, LK=4, stamp=False, wflag="nt", x=0, ev0=24, evd=24, psl=1, qsl=1, npre=4, dry=0, wsl=0, fsl=0, zsl=0, tch=1, mp=1, pa=1, ldry=1, peel=2, tm=1, sw=0, sg=0, dp=0, dsl=8, asl=2, hs='sc1', hl='sc1'):
    hs = hs.replace('_', ' '); hl = hl.replace('_', ' ')
    A = Asm()
    lds = LBK + NS * 8192
    NR = NS - 2; nk = nst // 2; LSC = 4096
    assert nk % 4 == 0 and LSC + nk * 64 <= LBK + 16384 and ev0 >= 4 * npre and ev0 + 3 * evd + 12 * sw + 60 * sg + 3 < nst
    hdr = open("cdna_kernels/" + NAME + ".s.ref").read().split("; Override launch")[0]
    pre = hdr + f"; @launch grid=(256,1,1) block=(320,1,1) lds={lds}\n"
    pre += f'.amdgcn_target "amdgcn-amd-amdhsa--gfx950"\n.text\n.globl {NAME}_kernel\n.p2align 8\n.type {NAME}_kernel,@function\n{NAME}_kernel:\n'
    uid = [0]
    def lab(p):
        uid[0] += 1; return f"L_{p}{uid[0]}"
    def ST(i):
        if stamp: A(f"s_memrealtime s[{70+2*i}:{71+2*i}]")
    def srd(d, base, size, off=None):
        if off is None: A(f"s_mov_b32 s{d}, s{base}\ns_mov_b32 s{d+1}, s{base+1}")
        else: A(f"s_add_u32 s{d}, s{base}, {off}\ns_addc_u32 s{d+1}, s{base+1}, 0")
        A(f"s_mov_b32 s{d+2}, {size}\ns_mov_b32 s{d+3}, 0x20000")
    def unpack(lo, hi, src):
        if hi == src: A(f"v_lshlrev_b32 v{lo}, 16, v{src}\nv_and_b32 v{hi}, s52, v{src}")
        else: A(f"v_and_b32 v{hi}, s52, v{src}\nv_lshlrev_b32 v{lo}, 16, v{src}")
    def rndn(rs):
        for a, b in zip(rs[::2], rs[1::2]): A(f"v_cvt_pk_bf16_f32 v{b}, v{a}, v{b}")
        for a, b in zip(rs[::2], rs[1::2]): unpack(a, b, b)
    def rnd1(a): A(f"v_cvt_pk_bf16_f32 v{a}, v{a}, v{a}\nv_lshlrev_b32 v{a}, 16, v{a}")
    def ror(op, rs, steps):
        for st in steps:
            for r in rs: A(f"{op}_dpp v{r}, v{r}, v{r} row_ror:{st} {DPP}")
    def quad(op, rs):
        for qp in ("[1,0,3,2]", "[2,3,0,1]"):
            for r in rs: A(f"{op}_dpp v{r}, v{r}, v{r} quad_perm:{qp} {DPP}")
    def xrows(op, pairs):
        for sw in ("v_permlane32_swap_b32", "v_permlane16_swap_b32"):
            for r, t in pairs: A(f"v_mov_b32 v{t}, v{r}")
            for r, t in pairs: A(f"{sw} v{r}, v{t}")
            for r, t in pairs: A(f"{op} v{r}, v{r}, v{t}")
    def halve(groups):
        for sw in ("v_permlane32_swap_b32", "v_permlane16_swap_b32"):
            for g in groups:
                for i in range(len(g) // 2): A(f"{sw} v{g[i]}, v{g[i+len(g)//2]}")
            for g in groups:
                for i in range(len(g) // 2): A(f"v_add_f32 v{g[i]}, v{g[i]}, v{g[i+len(g)//2]}")
            groups = [g[:len(g) // 2] for g in groups]
    def poll(loads, check, sleep=1):
        l = lab("poll"); d = lab("pdone")
        A(f"{l}:"); loads(); A("s_waitcnt vmcnt(0)"); check()
        A(f"s_cbranch_vccz {d}\n{'s_mov_b64 exec, vcc' if mp else ''}\ns_sub_u32 s59, s59, 1\ns_cbranch_scc1 L_end\n{'s_sleep %d' % sleep if sleep else ''}\ns_branch {l}\n{d}:")
        if mp: A("s_mov_b64 exec, s[66:67]")
    def poll2(loads, n, check, sleep, depth):
        if not depth: return poll(loads, check, sleep)
        l = lab("poll"); d = lab("pdone")
        for k in range(depth): loads(); A(f"s_sleep {dsl}")
        A(f"{l}:"); loads(); A(f"s_waitcnt vmcnt({n*depth})"); check()
        A(f"s_cbranch_vccz {d}\ns_mov_b64 exec, vcc\ns_sub_u32 s59, s59, 1\ns_cbranch_scc0 {l}\ns_branch L_end\n{d}:\ns_mov_b64 exec, s[66:67]")
    def chk_tags(rs, t):
        A(f"v_xor_b32 v{t}, s32, v{rs[0]}")
        for r in rs[1:]: A(f"v_xor_b32 v{r}, s32, v{r}")
        rr = rs[1:]
        while len(rr) >= 2: A(f"v_or3_b32 v{t}, v{t}, v{rr[0]}, v{rr[1]}"); rr = rr[2:]
        if rr: A(f"v_or_b32 v{t}, v{t}, v{rr[0]}")
        A(f"v_cmp_ne_u32 vcc, 0, v{t}")
    def chk_sent(rs, t):
        A(f"v_max_u32 v{t}, v{rs[0]}, v{rs[1]}"); rr = rs[2:]
        while len(rr) >= 2: A(f"v_max3_u32 v{t}, v{t}, v{rr[0]}, v{rr[1]}"); rr = rr[2:]
        A(f"v_cmp_eq_u32 vcc, -1, v{t}")
    def tile_load(wb, voff, stride):
        if x & 2 and stride < 6000: return
        for i in range(8):
            if i: A(f"s_mov_b32 s48, {i*stride}")
            A(f"buffer_load_dwordx4 v[{wb+4*i}:{wb+4*i+3}], v{voff}, s[40:43], {'s48' if i else '0'} offen {wflag}")
    def tile_tr(wb, spare):
        M = []
        for p in range(4):
            row = []
            for j in range(4):
                a, b = wb + 8 * p + j, wb + 8 * p + 4 + j
                A(f"v_perm_b32 v{spare}, v{b}, v{a}, s53\nv_perm_b32 v{b}, v{b}, v{a}, s54")
                row += [spare, b]; spare = a
            M.append(row)
        return M
    def tile_dot(M, act, acc):
        for p in range(4):
            for c in range(8): A(f"v_dot2_f32_bf16 v{acc+c}, v{M[p][c]}, v{act+p}, {'v%d' % (acc+c) if p else '0'}")
    def arrive(cnt, n, skip):
        A(f"s_waitcnt lgkmcnt(0)\ns_and_b64 exec, 1, s[66:67]\nv_mov_b32 v24, 1\nv_mov_b32 v25, {LCNT+4*cnt}")
        A(f"ds_add_rtn_u32 v24, v25, v24\ns_waitcnt lgkmcnt(0)\nv_readfirstlane_b32 s35, v24\ns_mov_b64 exec, s[66:67]")
        A(f"s_xor_b32 s35, s35, {n-1}\ns_and_b32 s35, s35, s66\ns_cbranch_scc1 {skip}")
    def gemv_tail(acc, cnt, skip):
        halve([list(range(acc, acc + 8))]); ror("v_add_f32", [acc, acc + 1], [8, 4])
        A(f"ds_write_b64 v67, v[{acc}:{acc+1}] offset:{LRED}")
        arrive(cnt, 4, skip)
        A("v_and_b32 v24, 15, v0\nv_lshlrev_b32 v24, 3, v24")
        for k in range(4): A(f"ds_read_b64 v[{26+2*k}:{27+2*k}], v24 offset:{LRED+128*k}")
        A("s_waitcnt lgkmcnt(0)\nv_pk_add_f32 v[26:27], v[26:27], v[28:29]\nv_pk_add_f32 v[30:31], v[30:31], v[32:33]\nv_pk_add_f32 v[26:27], v[26:27], v[30:31]")
    def ln_stats(src, t, mo, ro):
        for j in range(4): unpack(t + 2 * j, t + 2 * j + 1, src + j)
        A(f"v_add_f32 v{mo}, v{t}, v{t+1}")
        for j in range(2, 8): A(f"v_add_f32 v{mo}, v{mo}, v{t+j}")
        ror("v_add_f32", [mo], [8, 4, 2, 1]); xrows("v_add_f32", [(mo, t + 8)])
        A(f"v_mul_f32 v{mo}, 0x3b000000, v{mo}")
        for j in range(8): A(f"v_sub_f32 v{t+j}, v{t+j}, v{mo}")
        A(f"v_mul_f32 v{ro}, v{t}, v{t}")
        for j in range(1, 8): A(f"v_fmac_f32 v{ro}, v{t+j}, v{t+j}")
        ror("v_add_f32", [ro], [8, 4, 2, 1]); xrows("v_add_f32", [(ro, t + 8)])
        A(f"v_mul_f32 v{ro}, 0x3b000000, v{ro}")
        rndn([mo, ro])
        A(f"v_add_f32 v{ro}, 0x3727c5ac, v{ro}"); rnd1(ro)
        A(f"v_sqrt_f32 v{ro}, v{ro}"); rnd1(ro)
        A(f"v_rcp_f32 v{ro}, v{ro}")
    def ln_norm(x, mo, ro):
        X = list(range(x, x + 8))
        for r in X: A(f"v_sub_f32 v{r}, v{r}, v{mo}")
        rndn(X)
        for r in X: A(f"v_mul_f32 v{r}, v{r}, v{ro}")
        rndn(X)
    def modulate(x, c1, s, out):
        for j in range(8): A(f"v_mul_f32 v{x+j}, v{x+j}, v{c1+j}")
        rndn(list(range(x, x + 8)))
        for j in range(8): A(f"v_add_f32 v{x+j}, v{x+j}, v{s+j}")
        for j in range(4): A(f"v_cvt_pk_bf16_f32 v{out+j}, v{x+2*j}, v{x+2*j+1}")
    def get_mod(sec, dst):
        A(f"s_mov_b32 s48, {MODG + sec*2048}")
        A(f"buffer_load_dwordx4 v[{dst}:{dst+3}], v68, s[36:39], s48 offen sc1\nbuffer_load_dwordx4 v[{dst+4}:{dst+7}], v68, s[36:39], s48 offen offset:16 sc1")
    def granule_unpack(d, plus1=False):
        for j in range(4): unpack(d + 2 * j, d + 2 * j + 1, d + 2 * j)
        if plus1:
            for j in range(8): A(f"v_add_f32 v{d+j}, 1.0, v{d+j}")
            rndn(list(range(d, d + 8)))
    def qk(kb, n, xb=20):
        for t in range(4):
            for i in range(n): A(f"v_dot2_f32_bf16 v{xb+i}, v{kb+4*i+t}, v{4+t}, {'v%d' % (xb+i) if t else '0'}")
    def soft(n):
        X = list(range(20, 20 + n))
        ror("v_add_f32", X, [8, 4, 2, 1])
        rndn(X)
        for r in X: A(f"v_mul_f32 v{r}, s58, v{r}")
        rndn(X)
        if n == 4: A("v_max3_f32 v24, v20, v21, v22\nv_max3_f32 v24, v24, v23, v17")
        else: A("v_max3_f32 v24, v20, v21, v17")
        sk = lab("nors")
        A(f"v_cmp_gt_f32 vcc, v24, v17\ns_cbranch_vccz {sk}")
        A("v_mov_b32 v17, v24\nv_mul_f32 v25, s55, v24\nv_sub_f32 v24, v25, v18\nv_exp_f32 v24, v24\nv_mov_b32 v18, v25")
        for j in range(4): A(f"v_pk_mul_f32 v[{8+2*j}:{9+2*j}], v[{8+2*j}:{9+2*j}], v[24:25] op_sel_hi:[1,0]")
        A(f"v_mul_f32 v16, v16, v24\n{sk}:")
        for r in X: A(f"v_fma_f32 v{r}, v{r}, s51, v18")
        for r in X: A(f"v_exp_f32 v{r}, v{r}")
        for r in X: A(f"v_add_f32 v16, v16, v{r}")
    def pv(vb, n, pb=20):
        for i in range(n):
            for j in range(4): unpack(24 + 2 * j, 25 + 2 * j, vb + 4 * i + j)
            e = pb + (i & ~1)
            sel = "op_sel:[0,1,0] op_sel_hi:[1,1,1]" if i & 1 else "op_sel_hi:[1,0,1]"
            for j in range(4): A(f"v_pk_fma_f32 v[{8+2*j}:{9+2*j}], v[{24+2*j}:{25+2*j}], v[{e}:{e+1}], v[{8+2*j}:{9+2*j}] {sel}")
    def kscore():
        X = list(range(8, 16))
        ror("v_add_f32", X, [8, 4, 2, 1]); rndn(X)
        for r in X: A(f"v_mul_f32 v{r}, s58, v{r}")
        for j in range(4): A(f"v_cvt_pk_bf16_f32 v{20+j}, v{8+2*j}, v{9+2*j}")
        for j in range(4): A(f"v_max3_f32 v17, v{8+2*j}, v{9+2*j}, v17")
        A(f"s_mov_b64 exec, s[64:65]\nds_write_b128 v118, v[20:23] offset:{LSC}\ns_mov_b64 exec, -1\nv_add_u32 v118, 0x100, v118")
    def att_init():
        for r in range(8, 17): A(f"v_mov_b32 v{r}, 0")
        A("v_mov_b32 v17, 0xf149f2ca\nv_mul_f32 v18, s55, v17")

    def roles():
        A("s_sub_u32 s33, s3, 1\ns_lshr_b32 s48, s91, 1\ns_add_u32 s69, s35, s48\ns_and_b32 s69, s69, 7")
        A("s_lshl_b32 s48, s48, 2\ns_add_u32 s48, s48, s69\ns_lshl_b32 s48, s48, 1\ns_and_b32 s35, s91, 1\ns_or_b32 s34, s48, s35")
        A("s_sub_u32 s48, s69, 4\ns_lshl_b32 s48, s48, 5\ns_add_u32 s48, s48, s91\ns_cmp_ge_u32 s69, 4\ns_cselect_b32 s34, s48, s34")
        if tm & 1: A("s_and_b32 s34, s69, 3\ns_lshl_b32 s34, s34, 5\ns_add_u32 s34, s34, s91")
        A("s_sub_u32 s68, 7, s69\ns_lshl_b32 s68, s68, 5\ns_add_u32 s68, s68, s91")
        A("s_mov_b32 s53, 0x05040100\ns_mov_b32 s54, 0x07060302\ns_mov_b32 s51, 0x3fb8aa3b\ns_mov_b32 s55, 0xbfb8aa3b\ns_mov_b32 s52, 0xffff0000\ns_mov_b32 s58, 0x3db504f3")
    A("s_cmp_ge_u32 s2, 256\ns_cbranch_scc1 L_exit")
    A("s_load_dwordx16 s[4:19], s[0:1], 0\ns_load_dwordx8 s[20:27], s[0:1], 64\ns_load_dwordx4 s[28:31], s[0:1], 96")
    ST(0)
    if stamp:
        for i in range(1, 9): A(f"s_mov_b64 s[{70+2*i}:{71+2*i}], 0")
    A(f"v_lshrrev_b32 v1, 6, v0\nv_and_b32 v0, 63, v0\nv_mov_b32 v4, 0\nv_readfirstlane_b32 s3, v1")
    A(f"v_mov_b32 v5, 0\nv_mov_b32 v6, 0\nv_mov_b32 v7, 0\nv_mov_b32 v3, 0\nds_write_b128 v3, v[4:7] offset:{LCNT}\nds_write_b128 v3, v[4:7] offset:{LCONS}")
    A(f"v_bfrev_b32 v5, -2\nds_write_b128 v3, v[4:7] offset:{LPROD}")
    A("s_mov_b64 s[66:67], -1\ns_mov_b32 s59, 0x40000\nv_lshlrev_b32 v1, 4, v0\ns_lshr_b32 s91, s2, 3\ns_and_b32 s35, s2, 7")
    A("s_cmp_lg_u32 s3, 0\ns_waitcnt lgkmcnt(0)\ns_cbranch_scc1 L_cons")
    js = (N - 2) % 8
    A("s_setprio 3\ns_lshl_b32 s48, s35, 21\ns_lshl_b32 s35, s91, 24")
    A("s_mov_b32 s94, s35\ns_add_u32 s95, s94, 4096\ns_mov_b32 s96, s48")
    srd(40, 6, 1 << 24, "s94"); srd(44, 6, (1 << 24) - 4096, "s95")
    A(f"s_mov_b32 s89, {nk}\ns_movk_i32 s88, 8192")
    for q in range(2 * peel):
        A(f"s_mov_b32 m0, {LBK + 4096 * q}")
        for j in range(4): A(f"buffer_load_dwordx4 v1, s[40:43], s48 offen offset:{j*1024} nt lds")
        A("s_add_u32 s48, s48, 4096")
    A(f"s_mov_b32 s49, {nst - peel}\ns_mov_b32 s50, {LBK + 8192 * peel}\ns_mov_b32 s56, {peel}\ns_mov_b32 s57, {NS}\nv_mov_b32 v2, {(js + 2 - N)//8 - 1 + peel}")
    A(f"s_lshl_b32 s35, s91, 8\ns_add_u32 s35, s35, {TK}"); srd(36, 30, 256, "s35")
    if stamp: A("s_mov_b32 s93, 16")
    A("s_barrier")
    A(f"L_ll:\ns_cmp_ge_u32 s56, s57\ns_cbranch_scc1 L_lstall\ns_mov_b32 m0, s50")
    ngr = 8 * (512 - nst) // G
    over = {0: f"ds_read_b128 v[4:7], v3 offset:{LCONS}\ns_add_u32 s56, s56, 1",
            1: (f"s_cmp_eq_u32 s49, {LK}\ns_cbranch_scc1 L_tk\nL_tkr:" if ngr else ""),
            2: ("s_cmp_eq_u32 s56, s93\ns_cbranch_scc1 L_st\nL_str:" if stamp else ""),
            3: "s_add_u32 m0, s50, 4096\ns_add_u32 s50, s50, 8192",
            4: f"s_cmp_eq_u32 s50, {lds}\ns_cselect_b32 s50, {LBK+16384}, s50",
            5: "s_waitcnt lgkmcnt(0)\nv_min3_u32 v4, v4, v5, v6\nv_min_u32 v4, v4, v7",
            6: f"v_readfirstlane_b32 s57, v4\ns_add_u32 s57, s57, {NR}\ns_max_u32 s57, s57, {NS}",
            7: "s_add_u32 s48, s48, s88\ns_sub_u32 s49, s49, 1\ns_cmp_lg_u32 s49, s89"}
    for j in range(8):
        A(f"buffer_load_dwordx4 v1, s[{40+4*(j//4)}:{43+4*(j//4)}], s48 offen offset:{(j%4)*1024} nt lds")
        if j == js: A("v_add_u32 v2, 1, v2")
        A(over.get(j, ""))
        A(f"s_waitcnt vmcnt({N-1})")
        if j == js: A(f"ds_write_b32 v3, v2 offset:{LPROD}")
    A("s_cbranch_scc1 L_ll\ns_cmp_eq_u32 s89, 0\ns_cbranch_scc1 L_tick")
    srd(40, 8, 1 << 24, "s94"); srd(44, 8, (1 << 24) - 4096, "s95")
    A("s_mov_b32 s89, 0\ns_mov_b32 s48, s96\ns_branch L_ll\nL_tick:")
    if ngr: srd(40, 6, 1 << 24, "s94"); srd(44, 8, 1 << 24, "s94"); A("s_movk_i32 s88, 4096")
    if ngr:
        assert LK * 8 - 2 >= N - 1 and LK <= G
        A(f"v_readfirstlane_b32 s48, v8\ns_cmp_ge_u32 s48, {ngr}\ns_cbranch_scc1 L_ldone")
        A(f"s_and_b32 s35, s48, 7\ns_lshr_b32 s48, s48, 3\ns_mul_i32 s48, s48, {G*4096}\ns_lshl_b32 s35, s35, 21\ns_add_u32 s48, s48, {nst*4096}\ns_add_u32 s48, s48, s35\ns_mov_b32 s49, {G}\ns_branch L_ll")
        A("L_tk:\nv_mov_b32 v8, 1\ns_mov_b64 exec, 1\nbuffer_atomic_add v8, off, s[36:39], 0 sc0 sc1\ns_mov_b64 exec, -1\ns_branch L_tkr")
    A("L_ldone:")
    ST(1)
    A("v_mov_b32 v5, s56")
    for k in range((N - 1) // 8, -1, -1):
        A(f"v_subrev_u32 v4, {k}, v5\ns_waitcnt vmcnt({8*k})\nds_write_b64 v3, v[4:5] offset:{LPROD}")
    A("s_waitcnt lgkmcnt(0)")
    ST(3)
    if ldry:
        A("s_setprio 0\ns_and_b32 s35, s2, 7\ns_mov_b32 s3, 1"); roles(); srd(60, 26, 1024)
        for r in (24, 25, 26, 28, 30, 31, 66, 67, 68, 69, 116): A(f"v_mov_b32 v{r}, 0")
        A("s_mov_b32 s3, 0\ns_mov_b32 s90, 0\ns_mov_b32 s32, 0\ns_mov_b64 s[64:65], 0\ns_mov_b64 s[66:67], 0\ns_mov_b64 exec, 0\ns_branch L_notlast")
    else: A("s_branch L_end")
    if stamp:
        A("L_st:")
        pts = [16, 64, ev0 - 8, nst - 1]
        for i, p in enumerate(pts):
            A(f"s_cmp_lg_u32 s56, {p}\ns_cbranch_scc1 L_st{i}"); ST(4 + i); A(f"s_mov_b32 s93, {pts[i+1] if i < 3 else -1}\nL_st{i}:")
        A("s_branch L_str")
    A(f"L_lstall:")
    if stamp: A("s_cmp_lg_u32 s74, 0\ns_cbranch_scc1 L_ls2"); ST(2); A("L_ls2:")
    A(f"ds_read_b128 v[4:7], v3 offset:{LCONS}\ns_sub_u32 s59, s59, 1\ns_cbranch_scc1 L_end\ns_waitcnt lgkmcnt(0)")
    A(f"v_min3_u32 v4, v4, v5, v6\nv_min_u32 v4, v4, v7\nv_readfirstlane_b32 s57, v4\ns_add_u32 s57, s57, {NR}\ns_max_u32 s57, s57, {NS}\ns_branch L_ll")
    A("L_cons:")
    srd(36, 30, WSZ)
    A("buffer_load_dword v64, off, s[36:39], 0 sc1")
    roles()
    if ldry: A('s_setprio 1')
    A("v_lshrrev_b32 v65, 2, v0\nv_lshlrev_b32 v65, 3, v65\ns_lshl_b32 s35, s33, 7\nv_add_u32 v65, s35, v65")
    A("v_and_b32 v66, 3, v0\nv_lshlrev_b32 v66, 4, v66\nv_lshrrev_b32 v67, 4, v0\nv_lshlrev_b32 v67, 3, v67\nv_lshl_add_u32 v67, v66, 1, v67\nv_add_u32 v67, s35, v67")
    A("v_lshlrev_b32 v68, 2, v65\nv_lshlrev_b32 v69, 1, v65\ns_lshl_b32 s49, s34, 6")
    if x & 8: A("s_cmp_lg_u32 s69, 4\ns_cbranch_scc1 L_idle")
    A("s_cmp_lt_u32 s69, 4\ns_cbranch_scc1 L_qstage\ns_cmp_eq_u32 s69, 7\ns_cbranch_scc1 L_idle")
    A("s_cmp_lg_u32 s69, 4\ns_cbranch_scc1 L_noclr")
    for r in range(24, 28): A(f"v_mov_b32 v{r}, -1")
    A(f"s_lshl_b32 s35, s91, 2\ns_add_u32 s35, s35, s33\ns_lshl_b32 s48, s35, 10\ns_add_u32 s48, s48, {YP}\nbuffer_store_dwordx4 v[24:27], v1, s[36:39], s48 offen sc1")
    A(f"s_lshl_b32 s48, s35, 11\ns_add_u32 s48, s48, {PART}\ns_mov_b32 exec_hi, 15")
    A(f"buffer_store_dwordx4 v[24:27], v1, s[36:39], s48 offen sc1\nbuffer_store_dwordx4 v[24:27], v1, s[36:39], s48 offen offset:1024 sc1")
    A(f"s_lshl_b32 s48, s35, 6\ns_add_u32 s48, s48, {TK}\ns_mov_b64 exec, 1\nbuffer_store_dword v3, off, s[36:39], s48 sc1\ns_mov_b64 exec, -1")
    A("L_noclr:")
    A("global_load_dwordx4 v[72:75], v69, s[22:23]")
    srd(40, 24, 512 * 6144)
    A("s_movk_i32 s35, 6144\nv_mul_lo_u32 v70, s35, v65\nv_add3_u32 v70, v70, v66, s49")
    tile_load(128, 70, 6144)
    A("s_barrier\ns_waitcnt vmcnt(8)")
    for j in range(4): unpack(76 + 2 * j, 77 + 2 * j, 72 + j)
    A("s_mov_b32 s35, 0xb2a57060")
    for j in range(8): A(f"v_mul_f32 v{84+j}, s55, v{76+j}")
    for j in range(8): A(f"v_fma_f32 v{92+j}, v{76+j}, s55, -v{84+j}")
    for j in range(8): A(f"v_exp_f32 v{84+j}, v{84+j}")
    for j in range(8): A(f"v_fmac_f32 v{92+j}, s35, v{76+j}")
    for j in range(8): A(f"v_min_f32 v{84+j}, 0x7e000000, v{84+j}")
    for j in range(8): A(f"v_mul_f32 v{92+j}, 0x3f317218, v{92+j}")
    for j in range(8): A(f"v_fmac_f32 v{84+j}, v{92+j}, v{84+j}")
    for j in range(8): A(f"v_add_f32 v{84+j}, 1.0, v{84+j}")
    for j in range(8): A(f"v_rcp_f32 v{92+j}, v{84+j}")
    for j in range(8): A(f"v_mul_f32 v{100+j}, v{76+j}, v{92+j}")
    for j in range(8): A(f"v_fma_f32 v{84+j}, -v{100+j}, v{84+j}, v{76+j}")
    for j in range(8): A(f"v_fma_f32 v{84+j}, v{84+j}, v{92+j}, v{100+j}")
    for j in range(4): A(f"v_cvt_pk_bf16_f32 v{72+j}, v{84+2*j}, v{85+2*j}")
    A(f"v_readfirstlane_b32 s32, v64\ns_add_u32 s32, s32, 0x9e3779b9\ns_mov_b32 s50, {MODG}\ns_waitcnt vmcnt(0)")
    M = tile_tr(128, 127)
    A("s_branch L_pgemv")
    A("L_qstage:")
    A("global_load_dwordx4 v[72:75], v69, s[4:5]\nglobal_load_dwordx4 v[92:95], v1, s[4:5]")
    srd(40, 10, 512 * 8192)
    A("v_lshlrev_b32 v70, 13, v65\nv_add3_u32 v70, v70, v66, s49")
    tile_load(128, 70, 8192)
    A("s_barrier\ns_waitcnt vmcnt(8)")
    ln_stats(92, 96, 106, 107)
    for j in range(4): unpack(76 + 2 * j, 77 + 2 * j, 72 + j)
    ln_norm(76, 106, 107)
    A(f"v_readfirstlane_b32 s32, v64\ns_add_u32 s32, s32, 0x9e3779b9\ns_mov_b32 s50, {QG}\ns_waitcnt vmcnt(0)")
    tile_tr(128, 127)
    poll(lambda: (get_mod(0, 84), get_mod(1, 92)), lambda: chk_tags([85, 87, 89, 91, 93, 95, 97, 99], 100))
    ST(1)
    granule_unpack(84); granule_unpack(92, True)
    modulate(76, 92, 84, 72)
    A("L_pgemv:")
    tile_dot(M, 72, 8)
    gemv_tail(8, 0, "L_getq")
    A("v_cvt_pk_bf16_f32 v26, v26, v27\nv_mov_b32 v27, s32\ns_lshl_b32 s35, s34, 7\ns_add_u32 s50, s50, s35")
    A("s_mov_b64 exec, 0xffff\nbuffer_store_dwordx2 v[26:27], v24, s[36:39], s50 offen sc1\ns_mov_b64 exec, -1\ns_branch L_getq")
    A("L_idle:\ns_barrier\ns_waitcnt vmcnt(0)\nv_readfirstlane_b32 s32, v64\ns_add_u32 s32, s32, 0x9e3779b9")
    A("L_getq:")
    ST(2)
    srd(60, 26, 1024); srd(40, 12, 0); A("v_mov_b32 v116, 0\nv_mov_b32 v70, 0\ns_mov_b32 s90, 0")
    att_init()
    if tm & 2: A("s_bfe_u32 s34, s91, 0x30001\ns_lshl_b32 s34, s34, 1\ns_lshr_b32 s35, s91, 4\ns_add_u32 s34, s34, s35\ns_lshl_b32 s34, s34, 2\ns_and_b32 s35, s69, 3\ns_add_u32 s34, s34, s35")
    if tm & 2: A("s_lshl_b32 s34, s34, 1\ns_and_b32 s35, s91, 1\ns_add_u32 s34, s34, s35\ns_lshl_b32 s49, s34, 6")
    A(f"s_lshl_b32 s48, s91, 9\ns_add_u32 s48, s48, {QG}\nv_and_b32 v24, 15, v0\nv_lshlrev_b32 v24, 5, v24")
    A(f"s_mov_b32 s56, s33\ns_mul_i32 s57, s33, {1 + 4 * sw}\ns_lshr_b32 s35, s91, 1\ns_mul_i32 s35, s35, {4 * sg}\ns_add_u32 s57, s57, s35\ns_add_u32 s57, s57, {ev0}\ns_lshl_b32 s50, s33, 13\ns_add_u32 s50, s50, {LBK}\ns_mov_b32 s92, 0\ns_lshl_b32 s35, s33, 2\nv_mov_b32 v19, s35")
    def adv(): A(f"v_add_u32 v2, s50, v1\ns_add_u32 s50, s50, 32768\ns_cmp_ge_u32 s50, {lds}\ns_cselect_b32 s35, {NR*8192}, 0\ns_sub_u32 s50, s50, s35")
    def rd(b=32):
        for i in range(8 if not x & 4 else 0): A(f"ds_read_b128 v[{b+4*i}:{b+3+4*i}], v2 offset:{i*1024}")
        A("s_add_u32 s56, s56, 4\nv_mov_b32 v26, s56")
    A("v_and_b32 v118, 48, v0\nv_lshl_add_u32 v118, v19, 4, v118\ns_mov_b32 s64, 0x10001\ns_mov_b32 s65, 0x10001")
    PB = [32, 224, 128, 160, 192][:npre]
    for b in PB:
        adv()
        A(f"L_pw{b}:\nds_read_b32 v25, v3 offset:{LPROD}\ns_sub_u32 s59, s59, 1\ns_cbranch_scc1 L_end\ns_waitcnt lgkmcnt(0)\nv_cmp_lt_i32 vcc, s56, v25\ns_cbranch_vccz L_pw{b}")
        rd(b)
        A(f"s_waitcnt lgkmcnt(0)\nds_write_b32 v19, v26 offset:{LCONS}")
    if not x & 8: poll(lambda: A("buffer_load_dwordx4 v[72:75], v24, s[36:39], s48 offen sc1\nbuffer_load_dwordx4 v[76:79], v24, s[36:39], s48 offen offset:16 sc1"), lambda: chk_tags([73, 75, 77, 79], 25), qsl)
    for j in range(4): A(f"v_mov_b32 v{4+j}, v{72+2*j}")
    ST(3)
    for b in PB:
        if not x & 1: qk(b, 8, 8); kscore()
    A("L_cl:\ns_cmp_eq_u32 s56, s57\ns_cbranch_scc1 L_event")
    adv()
    A(f"L_cw:\nds_read_b64 v[24:25], v3 offset:{LPROD}\ns_waitcnt lgkmcnt(0)\nv_cmp_lt_i32 vcc, s56, v24\ns_cbranch_vccnz L_go")
    A(f"v_cmp_ge_i32 vcc, s56, v25\ns_cbranch_vccnz L_finish\ns_sub_u32 s59, s59, 1\ns_cbranch_scc1 L_end\ns_sleep {psl}\ns_branch L_cw")
    A(f"L_go:\ns_cmp_ge_u32 s56, {nk}\ns_cbranch_scc1 L_nok")
    rd()
    A("s_waitcnt lgkmcnt(4)")
    if not x & 1: qk(32, 4, 8)
    A(f"s_waitcnt lgkmcnt(0)\nds_write_b32 v19, v26 offset:{LCONS}")
    if not x & 1: qk(48, 4, 12); kscore()
    A(f"s_cmp_lt_u32 s56, {nk}\ns_cbranch_scc1 L_cl")
    rnd1(17)
    for r in range(8, 16): A(f"v_mov_b32 v{r}, 0")
    A(f"v_mul_f32 v18, s55, v17\nv_subrev_u32 v118, {nk*64}, v118\ns_branch L_cl")
    A(f"L_nok:\ns_cmp_ge_u32 s56, {nst}\ns_cbranch_scc1 L_mix\nds_read_b128 v[20:23], v118 offset:{LSC}")
    rd()
    A("v_add_u32 v118, 0x100, v118\ns_waitcnt lgkmcnt(8)")
    if not x & 1:
        for j in range(4): unpack(224 + 2 * j, 225 + 2 * j, 20 + j)
        for r in range(224, 232): A(f"v_fma_f32 v{r}, v{r}, s51, v18")
        for r in range(224, 232): A(f"v_exp_f32 v{r}, v{r}")
    A(f"s_waitcnt lgkmcnt(0)\nds_write_b32 v19, v26 offset:{LCONS}")
    if not x & 1:
        for r in range(224, 232): A(f"v_add_f32 v16, v16, v{r}")
        pv(32, 8, 224)
    A("s_branch L_cl\nL_mix:")
    rd()
    A("s_waitcnt lgkmcnt(4)")
    if not x & 1: qk(32, 4)
    A(f"s_waitcnt lgkmcnt(0)\nds_write_b32 v19, v26 offset:{LCONS}")
    if not x & 1: soft(4); pv(48, 4)
    A("s_branch L_cl")
    A(f"L_event:\ns_add_u32 s57, s57, {evd}\ns_add_u32 s92, s92, 1")
    for e in (2, 3, 4): A(f"s_cmp_eq_u32 s92, {e}\ns_cbranch_scc1 L_ev{e}")
    A("s_cmp_lt_u32 s69, 4\ns_cbranch_scc1 L_ldwo\ns_cmp_ge_u32 s68, 56\ns_cbranch_scc1 L_cl")
    A("s_movk_i32 s35, 3584\nv_mul_lo_u32 v70, s35, v65\ns_lshl_b32 s35, s68, 6\nv_add3_u32 v70, v70, v66, s35")
    srd(40, 16, 512 * 3584); tile_load(128, 70, 3584)
    A("s_branch L_cl\nL_ldwo:")
    A("s_lshr_b32 s35, s34, 4\ns_lshl_b32 s35, s35, 19"); srd(40, 12, 512 * 1024, "s35")
    A("s_and_b32 s35, s49, 0x3ff\nv_lshlrev_b32 v70, 10, v65\nv_add3_u32 v70, v70, v66, s35")
    tile_load(128, 70, 1024)
    A("s_branch L_cl")
    A("L_ev2:\ns_waitcnt vmcnt(0)")
    MW = tile_tr(128, 127)
    A("s_cmp_ge_u32 s68, 56\ns_cbranch_scc1 L_cl")
    srd(40, 18, 512 * 3584); tile_load(160, 70, 3584)
    A("s_branch L_cl")
    A("L_ev3:\ns_cmp_ge_u32 s68, 56\ns_cbranch_scc1 L_cl\ns_waitcnt vmcnt(0)")
    MU = tile_tr(160, 126)
    A("s_lshl_b32 s35, s68, 15"); srd(40, 20, 32 * 1024, "s35")
    A("v_lshrrev_b32 v70, 4, v0\nv_lshlrev_b32 v70, 13, v70\nv_and_b32 v71, 15, v0\nv_lshl_add_u32 v70, v71, 4, v70\ns_lshl_b32 s35, s33, 8\nv_add_u32 v70, s35, v70")
    tile_load(192, 70, 1024)
    A("s_branch L_cl")
    A("L_ev4:\ns_mov_b32 s57, -1")
    A("s_cmp_ge_u32 s68, 56\ns_cbranch_scc1 L_dry\ns_waitcnt vmcnt(0)")
    MD = tile_tr(192, 125)
    A("global_load_dwordx4 v[72:75], v69, s[4:5]")
    A("s_lshl_b32 s35, s68, 2\ns_add_u32 s35, s35, s33\ns_lshl_b32 s90, s35, 4\ns_lshl_b32 s35, s35, 2\nv_lshrrev_b32 v116, 4, v0\nv_add_u32 v116, s35, v116")
    A("v_and_b32 v116, 0x1ff, v116\nv_lshrrev_b32 v117, 1, v116\nv_lshlrev_b32 v117, 3, v117")
    def l3():
        get_mod(2, 84); get_mod(3, 92); get_mod(4, 100)
        A(f"s_mov_b32 s48, {MODG+5*2048}\nbuffer_load_dwordx2 v[108:109], v117, s[36:39], s48 offen sc1")
    if not x & 8: poll(l3, lambda: chk_tags(list(range(85, 110, 2)), 110), 8)
    granule_unpack(84); granule_unpack(92); granule_unpack(100, True)
    for j in range(4): unpack(76 + 2 * j, 77 + 2 * j, 72 + j)
    unpack(109, 108, 108)
    A("v_and_b32 v117, 1, v116\nv_cmp_eq_u32 vcc, 1, v117\nv_cndmask_b32 v108, v109, v108, vcc\nv_lshlrev_b32 v116, 1, v116")
    if tch: A("buffer_load_ushort v117, v116, s[60:63], 0 offen")
    A("L_dry:")
    if dry:
        for r in (24, 25, 26, 28, 29, 30, 31): A(f"v_mov_b32 v{r}, 0")
    A("s_mov_b64 s[66:67], 0\ns_mov_b64 exec, 0" if dry else "s_branch L_cl")
    A("L_finish:")
    A("v_mov_b32 v26, v18"); xrows("v_min_f32", [(26, 24)])
    A("v_sub_f32 v24, v26, v18\nv_exp_f32 v24, v24")
    A(f"v_and_b32 v28, 15, v0\nv_lshrrev_b32 v29, 4, v0\nv_lshlrev_b32 v28, 5, v28\nv_lshl_add_u32 v28, v29, 3, v28\ns_lshl_b32 s35, s33, 9")
    for j in range(4): A(f"v_pk_mul_f32 v[{8+2*j}:{9+2*j}], v[{8+2*j}:{9+2*j}], v[24:25] op_sel_hi:[1,0]")
    A("v_mul_f32 v27, v16, v24\nv_add_u32 v28, s35, v28\nv_lshlrev_b32 v29, 1, v19")
    halve([list(range(8, 16))]); xrows("v_add_f32", [(27, 24)])
    A(f"ds_write_b64 v28, v[8:9] offset:{LPO}\nds_write_b64 v29, v[26:27] offset:{LML}")
    arrive(1, 4, "L_notlast")
    A("v_lshlrev_b32 v25, 3, v0")
    for k in range(2): A(f"ds_read_b128 v[{32+4*k}:{35+4*k}], v3 offset:{LML+16*k}")
    for k in range(4): A(f"ds_read_b64 v[{48+2*k}:{49+2*k}], v25 offset:{LPO+512*k}")
    A(f"s_lshl_b32 s48, s2, 10\ns_add_u32 s48, s48, {PART}\ns_waitcnt lgkmcnt(4)")
    A("v_min3_f32 v26, v32, v34, v36\nv_min_f32 v26, v26, v38")
    for k in range(4): A(f"v_sub_f32 v{32+2*k}, v26, v{32+2*k}")
    for k in range(4): A(f"v_exp_f32 v{32+2*k}, v{32+2*k}")
    A("s_waitcnt lgkmcnt(0)\nv_mul_f32 v27, v32, v33\nv_pk_mul_f32 v[28:29], v[48:49], v[32:33] op_sel_hi:[1,0]")
    for k in range(1, 4):
        A(f"v_fmac_f32 v27, v{32+2*k}, v{33+2*k}\nv_pk_fma_f32 v[28:29], v[{48+2*k}:{49+2*k}], v[{32+2*k}:{33+2*k}], v[28:29] op_sel_hi:[1,0,1]")
    for r in (28, 29, 26, 27): A(f"v_min_u32 v{r}, -2, v{r}")
    A("buffer_store_dwordx2 v[28:29], v25, s[36:39], s48 offen sc1")
    A("s_and_b64 exec, 1, s[66:67]\nbuffer_store_dwordx2 v[26:27], off, s[36:39], s48 offset:512 sc1\ns_mov_b64 exec, s[66:67]")
    A("L_notlast:")
    ST(4)
    A("s_cmp_lt_u32 s68, 56\ns_cbranch_scc1 L_ffn\ns_cmp_ge_u32 s69, 4\ns_cbranch_scc1 L_end")
    A(f"s_lshr_b32 s35, s34, 4\ns_lshl_b32 s35, s35, 2\ns_add_u32 s35, s35, s33\ns_lshl_b32 s35, s35, 13\ns_add_u32 s48, s35, {PART}")
    A("v_lshlrev_b32 v30, 7, v66\nv_and_b32 v31, 0x1ff, v68\nv_add_u32 v31, v31, v30")
    def la():
        for p in range(2):
            A(f"buffer_load_dwordx2 v[{240+2*p}:{241+2*p}], v30, s[36:39], s48 offen offset:{1024*p+512} sc1")
            for h in range(2): A(f"buffer_load_dwordx4 v[{224+8*p+4*h}:{227+8*p+4*h}], v31, s[36:39], s48 offen offset:{1024*p+16*h} sc1")
    poll2(la, 6, lambda: chk_sent(list(range(224, 244)), 24), wsl, dp & 3)
    ST(5)
    A("v_min_f32 v24, v240, v242"); quad("v_min_f32", [24])
    A("v_sub_f32 v48, v24, v240\nv_sub_f32 v50, v24, v242\nv_exp_f32 v48, v48\nv_exp_f32 v50, v50")
    A("v_mul_f32 v24, v48, v241\nv_fmac_f32 v24, v50, v243")
    for j in range(4): A(f"v_pk_mul_f32 v[{32+2*j}:{33+2*j}], v[{224+2*j}:{225+2*j}], v[48:49] op_sel_hi:[1,0]")
    for j in range(4): A(f"v_pk_fma_f32 v[{32+2*j}:{33+2*j}], v[{232+2*j}:{233+2*j}], v[50:51], v[{32+2*j}:{33+2*j}] op_sel_hi:[1,0,1]")
    quad("v_add_f32", [24] + list(range(32, 40)))
    A("v_rcp_f32 v24, v24")
    for j in range(4): A(f"v_pk_mul_f32 v[{32+2*j}:{33+2*j}], v[{32+2*j}:{33+2*j}], v[24:25] op_sel_hi:[1,0]")
    for j in range(4): A(f"v_cvt_pk_bf16_f32 v{72+j}, v{32+2*j}, v{33+2*j}")
    tile_dot(MW, 72, 8)
    gemv_tail(8, 2, "L_end")
    A(f"v_min_u32 v26, -2, v26\nv_min_u32 v27, -2, v27\ns_lshl_b32 s48, s34, 7\ns_add_u32 s48, s48, {YP}")
    A("s_and_b64 exec, 0xffff, s[66:67]\nbuffer_store_dwordx2 v[26:27], v24, s[36:39], s48 offen sc1\ns_mov_b64 exec, s[66:67]")
    ST(6)
    A("s_branch L_end")
    A(f"L_ffn:\ns_mov_b32 s48, {YP}\nv_lshl_add_u32 v31, v66, 8, v68")
    if pa:
        A(f"s_and_b64 exec, 15, s[66:67]\nL_pa:\nbuffer_load_dword v32, v31, s[36:39], s48 offen sc1\ns_sub_u32 s59, s59, 1\ns_cbranch_scc1 L_end\ns_waitcnt vmcnt(0)")
        A(f"v_cmp_ne_u32 vcc, -1, v32\ns_cbranch_vccnz L_pad\ns_cbranch_execz L_pad\ns_sleep {asl}\ns_branch L_pa\nL_pad:\ns_mov_b64 exec, s[66:67]")
    def lb():
        for p in range(2):
            for h in range(2): A(f"buffer_load_dwordx4 v[{224+8*p+4*h}:{227+8*p+4*h}], v31, s[36:39], s48 offen offset:{2048*p+16*h} sc1")
    poll2(lb, 4, lambda: chk_sent(list(range(224, 240)), 24), fsl, dp >> 2 & 3)
    ST(5)
    Y = list(range(32, 40))
    for j in range(4): A(f"v_pk_add_f32 v[{32+2*j}:{33+2*j}], v[{224+2*j}:{225+2*j}], v[{232+2*j}:{233+2*j}]")
    quad("v_add_f32", Y); rndn(Y)
    modulate(32, 84, 76, 72)
    A(f"ds_write_b128 v69, v[72:75] offset:{LX2}")
    for j in range(4): unpack(76 + 2 * j, 77 + 2 * j, 72 + j)
    A(f"s_waitcnt lgkmcnt(0)\ns_cbranch_execz L_nb1\ns_barrier\nL_nb1:\nds_read_b128 v[32:35], v1 offset:{LX2}\nds_read_u16 v109, v116 offset:{LX2}\ns_waitcnt lgkmcnt(0)")
    ln_stats(32, 36, 46, 47)
    ln_norm(76, 46, 47)
    modulate(76, 100, 92, 72)
    tile_dot(MW, 72, 8); tile_dot(MU, 72, 16)
    halve([list(range(8, 16)), list(range(16, 24))]); ror("v_add_f32", [8, 9, 16, 17], [8, 4])
    A(f"ds_write_b64 v67, v[8:9] offset:{LRED}\nds_write_b64 v67, v[16:17] offset:{LRED+512}")
    A("v_and_b32 v24, 31, v0\nv_lshlrev_b32 v25, 2, v24\ns_lshl_b32 s35, s33, 6\nv_lshl_add_u32 v24, v24, 1, s35")
    A("v_lshrrev_b32 v26, 4, v0\nv_lshl_add_u32 v26, v26, 4, s35")
    A("s_waitcnt lgkmcnt(0)\ns_cbranch_execz L_nb2\ns_barrier\nL_nb2:")
    for k in range(4): A(f"ds_read2_b32 v[{32+2*k}:{33+2*k}], v25 offset0:{(LRED+128*k)//4} offset1:{(LRED+128*k+512)//4}" if (LRED+128*k+512)//4 < 256 else f"ds_read_b32 v{32+2*k}, v25 offset:{LRED+128*k}\nds_read_b32 v{33+2*k}, v25 offset:{LRED+128*k+512}")
    A("s_waitcnt lgkmcnt(0)\nv_pk_add_f32 v[32:33], v[32:33], v[34:35]\nv_pk_add_f32 v[36:37], v[36:37], v[38:39]\nv_pk_add_f32 v[32:33], v[32:33], v[36:37]")
    rndn([32, 33])
    A("v_mul_f32 v34, v32, v32\nv_mul_f32 v34, 0x3d372713, v34\nv_fma_f32 v34, v34, v32, v32\nv_mul_f32 v34, 0xc0135761, v34")
    A("v_exp_f32 v34, v34\nv_add_f32 v34, 1.0, v34\nv_rcp_f32 v34, v34\nv_mul_f32 v34, v34, v32"); rnd1(34)
    A(f"v_mul_f32 v34, v34, v33\nv_cvt_pk_bf16_f32 v34, v34, v34\nds_write_b16 v24, v34 offset:{LA}\ns_waitcnt lgkmcnt(0)\nds_read_b128 v[72:75], v26 offset:{LA}")
    A(f"s_lshl_b32 s48, s68, 11\ns_lshl_b32 s35, s33, 9\ns_add_u32 s48, s48, s35\ns_add_u32 s48, s48, {DP}")
    A("v_and_b32 v28, 15, v0\nv_lshrrev_b32 v29, 4, v0\nv_lshlrev_b32 v28, 5, v28\nv_lshl_add_u32 v28, v29, 3, v28\ns_waitcnt lgkmcnt(0)")
    tile_dot(MD, 72, 8)
    halve([list(range(8, 16))])
    A("v_min_u32 v8, -2, v8\nv_min_u32 v9, -2, v9\nbuffer_store_dwordx2 v[8:9], v28, s[36:39], s48 offen sc1")
    ST(6)
    A(f"s_cmp_ge_u32 s68, 32\ns_cbranch_scc1 L_end\ns_add_u32 s48, s90, {DP}\nv_lshlrev_b32 v31, 11, v0")
    poll2(lambda: A("buffer_load_dwordx4 v[240:243], v31, s[36:39], s48 offen sc1"), 1, lambda: chk_sent([240, 241, 242, 243], 24), zsl, dp >> 4 & 3)
    A("v_pk_mul_f32 v[32:33], v[240:241], 1.0 op_sel_hi:[1,0]\nv_pk_mul_f32 v[34:35], v[242:243], 1.0 op_sel_hi:[1,0]")
    ST(7)
    halve([[32, 33, 34, 35]]); ror("v_add_f32", [32], [8, 4, 2, 1]); rnd1(32)
    A("v_mul_f32 v32, v32, v108"); rnd1(32)
    A("v_lshlrev_b32 v109, 16, v109\nv_add_f32 v32, v32, v109\nv_cvt_pk_bf16_f32 v32, v32, v32")
    A("s_and_b64 exec, s[64:65], s[66:67]\nbuffer_store_short v32, v116, s[60:63], 0 offen")
    A("s_or_b32 s35, s68, s33\ns_cbranch_scc1 L_end\ns_and_b64 exec, 1, s[66:67]\nv_mov_b32 v24, s32\nbuffer_store_dword v24, off, s[36:39], 0 sc1")
    A("L_end:")
    if dry: A("s_cmp_lg_u32 s66, 0\ns_cbranch_scc1 L_fin\ns_mov_b64 s[66:67], -1\ns_mov_b64 exec, -1\ns_branch L_cl\nL_fin:")
    if stamp:
        ST(8)
        A("s_mov_b64 exec, 1\ns_add_u32 s30, s30, 0x8000000\ns_addc_u32 s31, s31, 0\ns_lshl_b32 s35, s2, 3\ns_add_u32 s35, s35, s3\ns_lshl_b32 s35, s35, 7\nv_mov_b32 v3, s35\ns_waitcnt lgkmcnt(0)")
        for i in range(9): A(f"v_mov_b32 v4, s{70+2*i}\nv_mov_b32 v5, s{71+2*i}\nglobal_store_dwordx2 v3, v[4:5], s[30:31] offset:{8*i}")
    A("L_exit:\ns_endpgm")
    post = f""".section .rodata,"a"
.p2align 6
.amdhsa_kernel {NAME}_kernel
  .amdhsa_next_free_vgpr 256
  .amdhsa_next_free_sgpr 102
  .amdhsa_accum_offset 256
  .amdhsa_group_segment_fixed_size 0
  .amdhsa_kernarg_size 112
  .amdhsa_user_sgpr_count 2
  .amdhsa_user_sgpr_kernarg_segment_ptr 1
  .amdhsa_system_sgpr_workgroup_id_x 1
  .amdhsa_float_denorm_mode_32 3
.end_amdhsa_kernel
"""
    t = A.text(); i = t.index("L_finish:")
    import re
    u = re.sub(r"(buffer_store.*) sc1", lambda m: m.group(1) + " " + hs, t[i:]); u = re.sub(r"(buffer_load.*) sc1", lambda m: m.group(1) + " " + hl, u)
    return pre + t[:i] + u + post
if __name__ == "__main__":
    out = sys.argv[1]
    kw = {}
    for a in sys.argv[2:]:
        k, v = a.split("=")
        kw[k] = int(v) if v.lstrip("-").isdigit() else v
    open(out, "w").write(gen(**kw))
```

```python
import sys
from asmlib import Asm
NAME = "adaLN_cond__mha_block_cached__geglu_ffn__decode"
DPP = "row_mask:0xf bank_mask:0xf"
MODG, QG, PART, YP, DP, WSZ = 0x1000, 0x4000, 0x10000, 0x50000, 0x54000, 0x70000
LCNT, LPROD, LFLAG, LCONS, LRED, LX2, LA, LML, LPO, LBK = 0, 16, 24, 32, 512, 1536, 2560, 3072, 4096, 8192
TK = 0x8000
def gen(N=21, NS=19, nst=480, G=4, LK=4, stamp=False, wflag="nt", x=0, ev0=24, evd=24, psl=1, qsl=1, npre=4, dry=0, wsl=0, fsl=0, zsl=0, tch=1, mp=1, pa=1, ldry=1, peel=2, tm=2, pm=0, rp=0, rsh=0, alt=0, ax=1, D=0, sw=0, sg=0, dp=0, dsl=8, asl=2, hs='sc1', hl='sc1'):
    hs = hs.replace('_', ' '); hl = hl.replace('_', ' ')
    A = Asm()
    DP = YP + (0x10000 if rp else 0x4000); WSZ = DP + 56 * 2048
    lds = LBK + NS * 8192
    NR = NS - 2; nk = nst // 2; LSC = 4096
    assert nk % 4 == 0 and LSC + nk * 64 <= LBK + 16384 and ev0 >= 4 * npre and ev0 + 3 * evd + 12 * sw + 60 * sg + 3 < nst
    hdr = open("cdna_kernels/" + NAME + ".s.ref").read().split("; Override launch")[0]
    pre = hdr + f"; @launch grid=(256,1,1) block=(320,1,1) lds={lds}\n"
    pre += f'.amdgcn_target "amdgcn-amd-amdhsa--gfx950"\n.text\n.globl {NAME}_kernel\n.p2align 8\n.type {NAME}_kernel,@function\n{NAME}_kernel:\n'
    uid = [0]
    def lab(p):
        uid[0] += 1; return f"L_{p}{uid[0]}"
    def ST(i):
        if stamp: A(f"s_memrealtime s[{70+2*i}:{71+2*i}]")
    def srd(d, base, size, off=None):
        if off is None: A(f"s_mov_b32 s{d}, s{base}\ns_mov_b32 s{d+1}, s{base+1}")
        else: A(f"s_add_u32 s{d}, s{base}, {off}\ns_addc_u32 s{d+1}, s{base+1}, 0")
        A(f"s_mov_b32 s{d+2}, {size}\ns_mov_b32 s{d+3}, 0x20000")
    def unpack(lo, hi, src):
        if hi == src: A(f"v_lshlrev_b32 v{lo}, 16, v{src}\nv_and_b32 v{hi}, s52, v{src}")
        else: A(f"v_and_b32 v{hi}, s52, v{src}\nv_lshlrev_b32 v{lo}, 16, v{src}")
    def rndn(rs):
        for a, b in zip(rs[::2], rs[1::2]): A(f"v_cvt_pk_bf16_f32 v{b}, v{a}, v{b}")
        for a, b in zip(rs[::2], rs[1::2]): unpack(a, b, b)
    def rnd1(a): A(f"v_cvt_pk_bf16_f32 v{a}, v{a}, v{a}\nv_lshlrev_b32 v{a}, 16, v{a}")
    def ror(op, rs, steps):
        for st in steps:
            for r in rs: A(f"{op}_dpp v{r}, v{r}, v{r} row_ror:{st} {DPP}")
    def quad(op, rs):
        for qp in ("[1,0,3,2]", "[2,3,0,1]"):
            for r in rs: A(f"{op}_dpp v{r}, v{r}, v{r} quad_perm:{qp} {DPP}")
    def xrows(op, pairs):
        for sw in ("v_permlane32_swap_b32", "v_permlane16_swap_b32"):
            for r, t in pairs: A(f"v_mov_b32 v{t}, v{r}")
            for r, t in pairs: A(f"{sw} v{r}, v{t}")
            for r, t in pairs: A(f"{op} v{r}, v{r}, v{t}")
    def halve(groups):
        for sw in ("v_permlane32_swap_b32", "v_permlane16_swap_b32"):
            for g in groups:
                for i in range(len(g) // 2): A(f"{sw} v{g[i]}, v{g[i+len(g)//2]}")
            for g in groups:
                for i in range(len(g) // 2): A(f"v_add_f32 v{g[i]}, v{g[i]}, v{g[i+len(g)//2]}")
            groups = [g[:len(g) // 2] for g in groups]
    def poll(loads, check, sleep=1):
        l = lab("poll"); d = lab("pdone")
        A(f"{l}:"); loads(); A("s_waitcnt vmcnt(0)"); check()
        A(f"s_cbranch_vccz {d}\n{'s_mov_b64 exec, vcc' if mp else ''}\ns_sub_u32 s59, s59, 1\ns_cbranch_scc1 L_end\n{'s_sleep %d' % sleep if sleep else ''}\ns_branch {l}\n{d}:")
        if mp: A("s_mov_b64 exec, s[66:67]")
    def poll2(loads, n, check, sleep, depth):
        if not depth: return poll(loads, check, sleep)
        l = lab("poll"); d = lab("pdone")
        for k in range(depth): loads(); A(f"s_sleep {dsl}")
        A(f"{l}:"); loads(); A(f"s_waitcnt vmcnt({n*depth})"); check()
        A(f"s_cbranch_vccz {d}\ns_mov_b64 exec, vcc\ns_sub_u32 s59, s59, 1\ns_cbranch_scc0 {l}\ns_branch L_end\n{d}:\ns_mov_b64 exec, s[66:67]")
    def chk_tags(rs, t):
        A(f"v_xor_b32 v{t}, s32, v{rs[0]}")
        for r in rs[1:]: A(f"v_xor_b32 v{r}, s32, v{r}")
        rr = rs[1:]
        while len(rr) >= 2: A(f"v_or3_b32 v{t}, v{t}, v{rr[0]}, v{rr[1]}"); rr = rr[2:]
        if rr: A(f"v_or_b32 v{t}, v{t}, v{rr[0]}")
        A(f"v_cmp_ne_u32 vcc, 0, v{t}")
    def chk_sent(rs, t):
        A(f"v_max_u32 v{t}, v{rs[0]}, v{rs[1]}"); rr = rs[2:]
        while len(rr) >= 2: A(f"v_max3_u32 v{t}, v{t}, v{rr[0]}, v{rr[1]}"); rr = rr[2:]
        A(f"v_cmp_eq_u32 vcc, -1, v{t}")
    def tile_load(wb, voff, stride):
        if x & 2 and stride < 6000: return
        for i in range(8):
            if i: A(f"s_mov_b32 s48, {i*stride}")
            A(f"buffer_load_dwordx4 v[{wb+4*i}:{wb+4*i+3}], v{voff}, s[40:43], {'s48' if i else '0'} offen {wflag}")
    def tile_tr(wb, spare):
        M = []
        for p in range(4):
            row = []
            for j in range(4):
                a, b = wb + 8 * p + j, wb + 8 * p + 4 + j
                A(f"v_perm_b32 v{spare}, v{b}, v{a}, s53\nv_perm_b32 v{b}, v{b}, v{a}, s54")
                row += [spare, b]; spare = a
            M.append(row)
        return M
    def tile_dot(M, act, acc):
        for p in range(4):
            for c in range(8): A(f"v_dot2_f32_bf16 v{acc+c}, v{M[p][c]}, v{act+p}, {'v%d' % (acc+c) if p else '0'}")
    def arrive(cnt, n, skip):
        A(f"s_waitcnt lgkmcnt(0)\ns_and_b64 exec, 1, s[66:67]\nv_mov_b32 v24, 1\nv_mov_b32 v25, {LCNT+4*cnt}")
        A(f"ds_add_rtn_u32 v24, v25, v24\ns_waitcnt lgkmcnt(0)\nv_readfirstlane_b32 s35, v24\ns_mov_b64 exec, s[66:67]")
        A(f"s_xor_b32 s35, s35, {n-1}\ns_and_b32 s35, s35, s66\ns_cbranch_scc1 {skip}")
    def gemv_tail(acc, cnt, skip):
        halve([list(range(acc, acc + 8))]); ror("v_add_f32", [acc, acc + 1], [8, 4])
        A(f"ds_write_b64 v67, v[{acc}:{acc+1}] offset:{LRED}")
        arrive(cnt, 4, skip)
        A("v_and_b32 v24, 15, v0\nv_lshlrev_b32 v24, 3, v24")
        for k in range(4): A(f"ds_read_b64 v[{26+2*k}:{27+2*k}], v24 offset:{LRED+128*k}")
        A("s_waitcnt lgkmcnt(0)\nv_pk_add_f32 v[26:27], v[26:27], v[28:29]\nv_pk_add_f32 v[30:31], v[30:31], v[32:33]\nv_pk_add_f32 v[26:27], v[26:27], v[30:31]")
    def ln_stats(src, t, mo, ro):
        for j in range(4): unpack(t + 2 * j, t + 2 * j + 1, src + j)
        A(f"v_pk_add_f32 v[{mo}:{ro}], v[{t}:{t+1}], v[{t+2}:{t+3}]\nv_pk_add_f32 v[{t+8}:{t+9}], v[{t+4}:{t+5}], v[{t+6}:{t+7}]")
        A(f"v_pk_add_f32 v[{mo}:{ro}], v[{mo}:{ro}], v[{t+8}:{t+9}]\nv_add_f32 v{mo}, v{mo}, v{ro}")
        ror("v_add_f32", [mo], [8, 4, 2, 1]); xrows("v_add_f32", [(mo, t + 8)])
        A(f"v_mul_f32 v{mo}, 0x3b000000, v{mo}")
        for j in range(0, 8, 2): A(f"v_pk_add_f32 v[{t+j}:{t+j+1}], v[{t+j}:{t+j+1}], v[{mo}:{ro}] op_sel_hi:[1,0] neg_lo:[0,1] neg_hi:[0,1]")
        A(f"v_pk_mul_f32 v[{t}:{t+1}], v[{t}:{t+1}], v[{t}:{t+1}]")
        for j in range(2, 8, 2): A(f"v_pk_fma_f32 v[{t}:{t+1}], v[{t+j}:{t+j+1}], v[{t+j}:{t+j+1}], v[{t}:{t+1}]")
        A(f"v_add_f32 v{ro}, v{t}, v{t+1}")
        ror("v_add_f32", [ro], [8, 4, 2, 1]); xrows("v_add_f32", [(ro, t + 8)])
        A(f"v_mul_f32 v{ro}, 0x3b000000, v{ro}")
        rndn([mo, ro])
        A(f"v_add_f32 v{ro}, 0x3727c5ac, v{ro}"); rnd1(ro)
        A(f"v_sqrt_f32 v{ro}, v{ro}"); rnd1(ro)
        A(f"v_rcp_f32 v{ro}, v{ro}")
    def ln_norm(x, mo, ro):
        X = list(range(x, x + 8))
        for r in X: A(f"v_sub_f32 v{r}, v{r}, v{mo}")
        rndn(X)
        for r in X: A(f"v_mul_f32 v{r}, v{r}, v{ro}")
        rndn(X)
    def modulate(x, c1, s, out):
        for j in range(8): A(f"v_mul_f32 v{x+j}, v{x+j}, v{c1+j}")
        rndn(list(range(x, x + 8)))
        for j in range(8): A(f"v_add_f32 v{x+j}, v{x+j}, v{s+j}")
        for j in range(4): A(f"v_cvt_pk_bf16_f32 v{out+j}, v{x+2*j}, v{x+2*j+1}")
    def get_mod(sec, dst):
        A(f"s_mov_b32 s48, {MODG + sec*2048}")
        A(f"buffer_load_dwordx4 v[{dst}:{dst+3}], v68, s[36:39], s48 offen sc1\nbuffer_load_dwordx4 v[{dst+4}:{dst+7}], v68, s[36:39], s48 offen offset:16 sc1")
    def granule_unpack(d, plus1=False):
        for j in range(4): unpack(d + 2 * j, d + 2 * j + 1, d + 2 * j)
        if plus1:
            for j in range(8): A(f"v_add_f32 v{d+j}, 1.0, v{d+j}")
            rndn(list(range(d, d + 8)))
    def qk(kb, n, xb=20):
        for t in range(4):
            for i in range(n): A(f"v_dot2_f32_bf16 v{xb+i}, v{kb+4*i+t}, v{4+t}, {'v%d' % (xb+i) if t else '0'}")
    def soft(n):
        X = list(range(20, 20 + n))
        ror("v_add_f32", X, [8, 4, 2, 1])
        rndn(X)
        for r in X: A(f"v_mul_f32 v{r}, s58, v{r}")
        rndn(X)
        if n == 4: A("v_max3_f32 v24, v20, v21, v22\nv_max3_f32 v24, v24, v23, v17")
        else: A("v_max3_f32 v24, v20, v21, v17")
        sk = lab("nors")
        A(f"v_cmp_gt_f32 vcc, v24, v17\ns_cbranch_vccz {sk}")
        A("v_mov_b32 v17, v24\nv_mul_f32 v25, s55, v24\nv_sub_f32 v24, v25, v18\nv_exp_f32 v24, v24\nv_mov_b32 v18, v25")
        for j in range(4): A(f"v_pk_mul_f32 v[{8+2*j}:{9+2*j}], v[{8+2*j}:{9+2*j}], v[24:25] op_sel_hi:[1,0]")
        A(f"v_mul_f32 v16, v16, v24\n{sk}:")
        for r in X: A(f"v_fma_f32 v{r}, v{r}, s51, v18")
        for r in X: A(f"v_exp_f32 v{r}, v{r}")
        for r in X: A(f"v_add_f32 v16, v16, v{r}")
    def pv(vb, n, pb=20):
        for i in range(n):
            for j in range(4): unpack(24 + 2 * j, 25 + 2 * j, vb + 4 * i + j)
            e = pb + (i & ~1)
            sel = "op_sel:[0,1,0] op_sel_hi:[1,1,1]" if i & 1 else "op_sel_hi:[1,0,1]"
            for j in range(4): A(f"v_pk_fma_f32 v[{8+2*j}:{9+2*j}], v[{24+2*j}:{25+2*j}], v[{e}:{e+1}], v[{8+2*j}:{9+2*j}] {sel}")
    def kscore():
        X = list(range(8, 16))
        ror("v_add_f32", X, [8, 4, 2, 1]); rndn(X)
        for r in X: A(f"v_mul_f32 v{r}, s58, v{r}")
        for j in range(4): A(f"v_cvt_pk_bf16_f32 v{20+j}, v{8+2*j}, v{9+2*j}")
        for j in range(4): A(f"v_max3_f32 v17, v{8+2*j}, v{9+2*j}, v17")
        A(f"s_mov_b64 exec, s[64:65]\nds_write_b128 v118, v[20:23] offset:{LSC}\ns_mov_b64 exec, -1\nv_add_u32 v118, 0x100, v118")
    def att_init():
        for r in range(8, 17): A(f"v_mov_b32 v{r}, 0")
        A("v_mov_b32 v17, 0xf149f2ca\nv_mul_f32 v18, s55, v17")

    def roles():
        A("s_sub_u32 s33, s3, 1\ns_lshr_b32 s48, s91, 1\ns_add_u32 s69, s35, s48\ns_and_b32 s69, s69, 7")
        A("s_lshl_b32 s48, s48, 2\ns_add_u32 s48, s48, s69\ns_lshl_b32 s48, s48, 1\ns_and_b32 s35, s91, 1\ns_or_b32 s34, s48, s35")
        A("s_sub_u32 s48, s69, 4\ns_lshl_b32 s48, s48, 5\ns_add_u32 s48, s48, s91\ns_cmp_ge_u32 s69, 4\ns_cselect_b32 s34, s48, s34")
        if tm & 1: A("s_and_b32 s34, s69, 3\ns_lshl_b32 s34, s34, 5\ns_add_u32 s34, s34, s91")
        A("s_sub_u32 s68, 7, s69\ns_lshl_b32 s68, s68, 5\ns_add_u32 s68, s68, s91")
        A("s_mov_b32 s53, 0x05040100\ns_mov_b32 s54, 0x07060302\ns_mov_b32 s51, 0x3fb8aa3b\ns_mov_b32 s55, 0xbfb8aa3b\ns_mov_b32 s52, 0xffff0000\ns_mov_b32 s58, 0x3db504f3")
    A("s_cmp_ge_u32 s2, 256\ns_cbranch_scc1 L_exit")
    A("s_load_dwordx16 s[4:19], s[0:1], 0\ns_load_dwordx8 s[20:27], s[0:1], 64\ns_load_dwordx4 s[28:31], s[0:1], 96")
    ST(0)
    if stamp:
        for i in range(1, 9): A(f"s_mov_b64 s[{70+2*i}:{71+2*i}], 0")
    A(f"v_lshrrev_b32 v1, 6, v0\nv_and_b32 v0, 63, v0\nv_mov_b32 v4, 0\nv_readfirstlane_b32 s3, v1")
    A(f"v_mov_b32 v5, 0\nv_mov_b32 v6, 0\nv_mov_b32 v7, 0\nv_mov_b32 v3, 0\nds_write_b128 v3, v[4:7] offset:{LCNT}\nds_write_b128 v3, v[4:7] offset:{LCONS}")
    A(f"v_bfrev_b32 v5, -2\nds_write_b128 v3, v[4:7] offset:{LPROD}")
    A("s_mov_b64 s[66:67], -1\ns_mov_b32 s59, 0x40000\nv_lshlrev_b32 v1, 4, v0\ns_lshr_b32 s91, s2, 3\ns_and_b32 s35, s2, 7")
    A("s_cmp_lg_u32 s3, 0\ns_waitcnt lgkmcnt(0)\ns_cbranch_scc1 L_cons")
    js = (N - 2) % 8
    A("s_setprio 3\ns_lshl_b32 s48, s35, 21\ns_lshl_b32 s35, s91, 24")
    A("s_mov_b32 s94, s35\ns_add_u32 s95, s94, 4096\ns_mov_b32 s96, s48")
    srd(40, 6, 1 << 24, "s94"); srd(44, 6, (1 << 24) - 4096, "s95")
    A(f"s_mov_b32 s89, {nk}\ns_movk_i32 s88, 8192")
    for q in range(2 * peel):
        A(f"s_mov_b32 m0, {LBK + 4096 * q}")
        for j in range(4): A(f"buffer_load_dwordx4 v1, s[40:43], s48 offen offset:{j*1024} nt lds")
        A("s_add_u32 s48, s48, 4096")
    A(f"s_mov_b32 s49, {nst - peel}\ns_mov_b32 s50, {LBK + 8192 * peel}\ns_mov_b32 s56, {peel}\ns_mov_b32 s57, {NS}\nv_mov_b32 v2, {(js + 2 - N)//8 - 1 + peel}")
    A(f"s_lshl_b32 s35, s91, 8\ns_add_u32 s35, s35, {TK}"); srd(36, 30, 256, "s35")
    if stamp: A("s_mov_b32 s93, 16")
    A("s_barrier")
    A(f"L_ll:\ns_cmp_ge_u32 s56, s57\ns_cbranch_scc1 L_lstall\ns_mov_b32 m0, s50")
    ngr = 8 * (512 - nst) // G
    over = {0: f"ds_read_b128 v[4:7], v3 offset:{LCONS}\ns_add_u32 s56, s56, 1",
            1: (f"s_cmp_eq_u32 s49, {LK}\ns_cbranch_scc1 L_tk\nL_tkr:" if ngr else ""),
            2: ("s_cmp_eq_u32 s56, s93\ns_cbranch_scc1 L_st\nL_str:" if stamp else ""),
            3: "s_add_u32 m0, s50, 4096\ns_add_u32 s50, s50, 8192",
            4: f"s_cmp_eq_u32 s50, {lds}\ns_cselect_b32 s50, {LBK+16384}, s50",
            5: "s_waitcnt lgkmcnt(0)\nv_min3_u32 v4, v4, v5, v6\nv_min_u32 v4, v4, v7",
            6: f"v_readfirstlane_b32 s57, v4\ns_add_u32 s57, s57, {NR}\ns_max_u32 s57, s57, {NS}",
            7: "s_add_u32 s48, s48, s88\ns_sub_u32 s49, s49, 1\ns_cmp_lg_u32 s49, s89"}
    for j in range(8):
        A(f"buffer_load_dwordx4 v1, s[{40+4*(j//4)}:{43+4*(j//4)}], s48 offen offset:{(j%4)*1024} nt lds")
        if j == js: A("v_add_u32 v2, 1, v2")
        A(over.get(j, ""))
        A(f"s_waitcnt vmcnt({N-1})")
        if j == js: A(f"ds_write_b32 v3, v2 offset:{LPROD}")
    A("s_cbranch_scc1 L_ll\ns_cmp_eq_u32 s89, 0\ns_cbranch_scc1 L_tick")
    srd(40, 8, 1 << 24, "s94"); srd(44, 8, (1 << 24) - 4096, "s95")
    A("s_mov_b32 s89, 0\ns_mov_b32 s48, s96\ns_branch L_ll\nL_tick:")
    if ngr: srd(40, 6, 1 << 24, "s94"); srd(44, 8, 1 << 24, "s94"); A("s_movk_i32 s88, 4096")
    if ngr:
        assert LK * 8 - 2 >= N - 1 and LK <= G
        A(f"v_readfirstlane_b32 s48, v8\ns_cmp_ge_u32 s48, {ngr}\ns_cbranch_scc1 L_ldone\ns_mov_b32 s97, s48")
        A(f"s_and_b32 s35, s48, 7\ns_lshr_b32 s48, s48, 3\ns_mul_i32 s48, s48, {G*4096}\ns_lshl_b32 s35, s35, 21\ns_add_u32 s48, s48, {nst*4096}\ns_add_u32 s48, s48, s35\ns_mov_b32 s49, {G}")
        if D:
            assert LK == G and 16 * G + 1 < 64 and (N - 1) // 8 == G - 1
            A(f"s_cmp_lt_u32 s97, {ngr - D}\ns_cbranch_scc1 L_ll\ns_add_u32 s35, s56, {G}\ns_cmp_gt_u32 s35, s57\ns_cbranch_scc1 L_ll")
            A(f"v_mov_b32 v8, 1\ns_mov_b64 exec, 1\nbuffer_atomic_add v8, off, s[36:39], 0 sc0 sc1\ns_mov_b64 exec, -1\ns_mov_b32 s56, s35\nv_add_u32 v2, {G}, v2")
            for it in range(G):
                for kv in range(2):
                    A(f"s_add_u32 m0, s50, {4096*kv}")
                    for j in range(4): A(f"buffer_load_dwordx4 v1, s[{40+4*kv}:{43+4*kv}], s48 offen offset:{j*1024} nt lds")
                A(f"s_add_u32 s50, s50, 8192\ns_add_u32 s48, s48, 4096\ns_cmp_eq_u32 s50, {lds}\ns_cselect_b32 s50, {LBK+16384}, s50")
            A("v_mov_b32 v9, s56")
            for k in range(2 * G - 1, G - 1, -1): A(f"v_subrev_u32 v10, {k}, v9\ns_waitcnt vmcnt({8*k})\nds_write_b32 v3, v10 offset:{LPROD}")
            A(f"ds_read_b128 v[4:7], v3 offset:{LCONS}\ns_waitcnt lgkmcnt(0)\nv_min3_u32 v4, v4, v5, v6\nv_min_u32 v4, v4, v7\nv_readfirstlane_b32 s57, v4\ns_add_u32 s57, s57, {NR}\ns_branch L_tick")
        else: A("s_branch L_ll")
        A("L_tk:\nv_mov_b32 v8, 1\ns_mov_b64 exec, 1\nbuffer_atomic_add v8, off, s[36:39], 0 sc0 sc1\ns_mov_b64 exec, -1\ns_branch L_tkr")
    A("L_ldone:")
    ST(1)
    A("v_mov_b32 v5, s56")
    for k in range((N - 1) // 8, -1, -1):
        A(f"v_subrev_u32 v4, {k}, v5\ns_waitcnt vmcnt({8*k})\nds_write_b64 v3, v[4:5] offset:{LPROD}")
    A("s_waitcnt lgkmcnt(0)")
    ST(3)
    if ldry:
        A("s_setprio 0\ns_and_b32 s35, s2, 7\ns_mov_b32 s3, 1"); roles(); srd(60, 26, 1024)
        for r in (24, 25, 26, 28, 30, 31, 66, 67, 68, 69, 110, 111, 112, 113, 114, 115, 116, 120, 122): A(f"v_mov_b32 v{r}, 0")
        A("s_mov_b32 s49, 0\ns_mov_b32 s3, 0\ns_mov_b32 s90, 0\ns_mov_b32 s32, 0\ns_mov_b64 s[64:65], 0\ns_mov_b64 s[66:67], 0\ns_mov_b64 exec, 0\ns_branch L_notlast")
    else: A("s_branch L_end")
    if stamp:
        A("L_st:")
        pts = [16, 64, ev0 - 8, nst - 1]
        for i, p in enumerate(pts):
            A(f"s_cmp_lg_u32 s56, {p}\ns_cbranch_scc1 L_st{i}"); ST(4 + i); A(f"s_mov_b32 s93, {pts[i+1] if i < 3 else -1}\nL_st{i}:")
        A("s_branch L_str")
    A(f"L_lstall:")
    if stamp: A("s_cmp_lg_u32 s74, 0\ns_cbranch_scc1 L_ls2"); ST(2); A("L_ls2:")
    A(f"ds_read_b128 v[4:7], v3 offset:{LCONS}\ns_sub_u32 s59, s59, 1\ns_cbranch_scc1 L_end\ns_waitcnt lgkmcnt(0)")
    A(f"v_min3_u32 v4, v4, v5, v6\nv_min_u32 v4, v4, v7\nv_readfirstlane_b32 s57, v4\ns_add_u32 s57, s57, {NR}\ns_max_u32 s57, s57, {NS}\ns_branch L_ll")
    A("L_cons:")
    srd(36, 30, WSZ)
    A("buffer_load_dword v64, off, s[36:39], 0 sc1")
    roles()
    if ldry: A('s_setprio 1')
    A("v_lshrrev_b32 v65, 2, v0\nv_lshlrev_b32 v65, 3, v65\ns_lshl_b32 s35, s33, 7\nv_add_u32 v65, s35, v65")
    A("v_and_b32 v66, 3, v0\nv_lshlrev_b32 v66, 4, v66\nv_lshrrev_b32 v67, 4, v0\nv_lshlrev_b32 v67, 3, v67\nv_lshl_add_u32 v67, v66, 1, v67\nv_add_u32 v67, s35, v67")
    A("v_lshlrev_b32 v68, 2, v65\nv_lshlrev_b32 v69, 1, v65\ns_lshl_b32 s49, s34, 6")
    if x & 8: A("s_cmp_lg_u32 s69, 4\ns_cbranch_scc1 L_idle")
    A("s_cmp_lt_u32 s69, 4\ns_cbranch_scc1 L_qstage\ns_cmp_eq_u32 s69, 7\ns_cbranch_scc1 L_idle")
    A("s_cmp_lg_u32 s69, 4\ns_cbranch_scc1 L_noclr")
    for r in range(24, 28): A(f"v_mov_b32 v{r}, -1")
    A(f"s_lshl_b32 s35, s91, 2\ns_add_u32 s35, s35, s33\ns_mul_i32 s50, s35, {(WSZ - YP) // 128}\ns_add_u32 s50, s50, {YP}\nbuffer_store_dwordx4 v[24:27], v1, s[36:39], s50 offen sc1")
    A(f"s_lshl_b32 s48, s35, 11\ns_add_u32 s48, s48, {PART}\ns_mov_b32 exec_hi, 15")
    A(f"buffer_store_dwordx4 v[24:27], v1, s[36:39], s48 offen sc1\nbuffer_store_dwordx4 v[24:27], v1, s[36:39], s48 offen offset:1024 sc1")
    if rp: A("s_mov_b64 exec, 0xffffff\nbuffer_store_dwordx4 v[24:27], v1, s[36:39], s50 offen offset:1024 sc1")
    A(f"s_lshl_b32 s48, s35, 6\ns_add_u32 s48, s48, {TK}\ns_mov_b64 exec, 1\nbuffer_store_dword v3, off, s[36:39], s48 sc1\ns_mov_b64 exec, -1")
    A("L_noclr:")
    A("global_load_dwordx4 v[72:75], v69, s[22:23]")
    srd(40, 24, 512 * 6144)
    A("s_movk_i32 s35, 6144\nv_mul_lo_u32 v70, s35, v65\nv_add3_u32 v70, v70, v66, s49")
    tile_load(128, 70, 6144)
    A("s_barrier\ns_waitcnt vmcnt(8)")
    for j in range(4): unpack(76 + 2 * j, 77 + 2 * j, 72 + j)
    A("s_mov_b32 s35, 0xb2a57060")
    for j in range(8): A(f"v_mul_f32 v{84+j}, s55, v{76+j}")
    for j in range(8): A(f"v_fma_f32 v{92+j}, v{76+j}, s55, -v{84+j}")
    for j in range(8): A(f"v_exp_f32 v{84+j}, v{84+j}")
    for j in range(8): A(f"v_fmac_f32 v{92+j}, s35, v{76+j}")
    for j in range(8): A(f"v_min_f32 v{84+j}, 0x7e000000, v{84+j}")
    for j in range(8): A(f"v_mul_f32 v{92+j}, 0x3f317218, v{92+j}")
    for j in range(8): A(f"v_fmac_f32 v{84+j}, v{92+j}, v{84+j}")
    for j in range(8): A(f"v_add_f32 v{84+j}, 1.0, v{84+j}")
    for j in range(8): A(f"v_rcp_f32 v{92+j}, v{84+j}")
    for j in range(8): A(f"v_mul_f32 v{100+j}, v{76+j}, v{92+j}")
    for j in range(8): A(f"v_fma_f32 v{84+j}, -v{100+j}, v{84+j}, v{76+j}")
    for j in range(8): A(f"v_fma_f32 v{84+j}, v{84+j}, v{92+j}, v{100+j}")
    for j in range(4): A(f"v_cvt_pk_bf16_f32 v{72+j}, v{84+2*j}, v{85+2*j}")
    A(f"v_readfirstlane_b32 s32, v64\ns_add_u32 s32, s32, 0x9e3779b9\ns_mov_b32 s50, {MODG}\ns_waitcnt vmcnt(0)")
    M = tile_tr(128, 127)
    A("s_branch L_pgemv")
    A("L_qstage:")
    A("global_load_dwordx4 v[72:75], v69, s[4:5]\nglobal_load_dwordx4 v[92:95], v1, s[4:5]")
    srd(40, 10, 512 * 8192)
    A("v_lshlrev_b32 v70, 13, v65\nv_add3_u32 v70, v70, v66, s49")
    tile_load(128, 70, 8192)
    A("s_barrier\ns_waitcnt vmcnt(8)")
    ln_stats(92, 96, 106, 107)
    for j in range(4): unpack(76 + 2 * j, 77 + 2 * j, 72 + j)
    ln_norm(76, 106, 107)
    A(f"v_readfirstlane_b32 s32, v64\ns_add_u32 s32, s32, 0x9e3779b9\ns_mov_b32 s50, {QG}\ns_waitcnt vmcnt(0)")
    tile_tr(128, 127)
    poll(lambda: (get_mod(0, 84), get_mod(1, 92)), lambda: chk_tags([85, 87, 89, 91, 93, 95, 97, 99], 100))
    ST(1)
    granule_unpack(84); granule_unpack(92, True)
    modulate(76, 92, 84, 72)
    A("L_pgemv:")
    tile_dot(M, 72, 8)
    gemv_tail(8, 0, "L_getq")
    A("v_cvt_pk_bf16_f32 v26, v26, v27\nv_mov_b32 v27, s32\ns_lshl_b32 s35, s34, 7\ns_add_u32 s50, s50, s35")
    A("s_mov_b64 exec, 0xffff\nbuffer_store_dwordx2 v[26:27], v24, s[36:39], s50 offen sc1\ns_mov_b64 exec, -1\ns_branch L_getq")
    A("L_idle:\ns_barrier\ns_waitcnt vmcnt(0)\nv_readfirstlane_b32 s32, v64\ns_add_u32 s32, s32, 0x9e3779b9")
    A("L_getq:")
    ST(2)
    srd(60, 26, 1024); srd(40, 12, 0); A("v_mov_b32 v116, 0\nv_mov_b32 v70, 0\ns_mov_b32 s90, 0")
    att_init()
    if tm & 2: A("s_bfe_u32 s34, s91, 0x30001\ns_lshl_b32 s34, s34, 1\ns_lshr_b32 s35, s91, 4\ns_add_u32 s34, s34, s35\ns_lshl_b32 s34, s34, 2\ns_and_b32 s35, s69, 3\ns_add_u32 s34, s34, s35")
    if tm & 2: A("s_lshl_b32 s34, s34, 1\ns_and_b32 s35, s91, 1\ns_add_u32 s34, s34, s35\ns_lshl_b32 s49, s34, 6")
    A(f"s_lshl_b32 s48, s91, 9\ns_add_u32 s48, s48, {QG}\nv_and_b32 v24, 15, v0\nv_lshlrev_b32 v24, 5, v24")
    A(f"s_mov_b32 s56, s33\ns_mul_i32 s57, s33, {1 + 4 * sw}\ns_lshr_b32 s35, s91, 1\ns_mul_i32 s35, s35, {4 * sg}\ns_add_u32 s57, s57, s35\ns_add_u32 s57, s57, {ev0}\ns_lshl_b32 s50, s33, 13\ns_add_u32 s50, s50, {LBK}\ns_mov_b32 s92, 0\ns_lshl_b32 s35, s33, 2\nv_mov_b32 v19, s35")
    def adv(): A(f"v_add_u32 v2, s50, v1\ns_add_u32 s50, s50, 32768\ns_cmp_ge_u32 s50, {lds}\ns_cselect_b32 s35, {NR*8192}, 0\ns_sub_u32 s50, s50, s35")
    def rd(b=32):
        for i in range(8 if not x & 4 else 0): A(f"ds_read_b128 v[{b+4*i}:{b+3+4*i}], v2 offset:{i*1024}")
        A("s_add_u32 s56, s56, 4\nv_mov_b32 v26, s56")
    A("v_and_b32 v118, 48, v0\nv_lshl_add_u32 v118, v19, 4, v118\ns_mov_b32 s64, 0x10001\ns_mov_b32 s65, 0x10001")
    A("v_lshrrev_b32 v119, 2, v0\nv_lshlrev_b32 v119, 4, v119\nv_and_b32 v120, 1, v0\nv_lshl_add_u32 v119, v120, 3, v119\nv_and_b32 v120, 63, v119\nv_and_b32 v121, 2, v0")
    A("v_lshl_add_u32 v119, v121, 7, v119\nv_lshl_add_u32 v120, v121, 9, v120")
    if not pm & 1: A("v_lshlrev_b32 v119, 3, v0")
    if not pm & 2: A("v_and_b32 v120, 15, v0\nv_lshlrev_b32 v120, 3, v120")
    if rp: A("v_lshrrev_b32 v121, 4, v0\nv_lshl_add_u32 v120, v121, 14, v120")
    A("v_lshlrev_b32 v110, 3, v0\nv_lshl_add_u32 v110, v19, 7, v110\nv_lshrrev_b32 v111, 1, v110")
    A("v_and_b32 v112, 31, v0\nv_lshlrev_b32 v113, 2, v112\nv_add_u32 v122, 0x80, v113\nv_lshlrev_b32 v114, 4, v19\nv_lshl_add_u32 v112, v112, 1, v114")
    A("v_lshrrev_b32 v121, 4, v0\nv_lshl_add_u32 v114, v121, 4, v114\nv_and_b32 v115, 15, v0\nv_lshlrev_b32 v115, 5, v115\nv_lshl_add_u32 v115, v121, 3, v115")
    PB = [32, 224, 128, 160, 192][:npre]
    for b in PB:
        adv()
        A(f"L_pw{b}:\nds_read_b32 v25, v3 offset:{LPROD}\ns_sub_u32 s59, s59, 1\ns_cbranch_scc1 L_end\ns_waitcnt lgkmcnt(0)\nv_cmp_lt_i32 vcc, s56, v25\ns_cbranch_vccz L_pw{b}")
        rd(b)
        A(f"s_waitcnt lgkmcnt(0)\nds_write_b32 v19, v26 offset:{LCONS}")
    if not x & 8: poll(lambda: A("buffer_load_dwordx4 v[72:75], v24, s[36:39], s48 offen sc1\nbuffer_load_dwordx4 v[76:79], v24, s[36:39], s48 offen offset:16 sc1"), lambda: chk_tags([73, 75, 77, 79], 25), qsl)
    for j in range(4): A(f"v_mov_b32 v{4+j}, v{72+2*j}")
    ST(3)
    for b in PB:
        if not x & 1: qk(b, 8, 8); kscore()
    A("L_cl:\ns_cmp_eq_u32 s56, s57\ns_cbranch_scc1 L_event")
    adv()
    A(f"L_cw:\nds_read_b64 v[24:25], v3 offset:{LPROD}\ns_waitcnt lgkmcnt(0)\nv_cmp_lt_i32 vcc, s56, v24\ns_cbranch_vccnz L_go")
    A(f"v_cmp_ge_i32 vcc, s56, v25\ns_cbranch_vccnz L_finish\ns_sub_u32 s59, s59, 1\ns_cbranch_scc1 L_end\ns_sleep {psl}\ns_branch L_cw")
    A(f"L_go:\ns_cmp_ge_u32 s56, {nk}\ns_cbranch_scc1 L_nok")
    rd()
    A("s_waitcnt lgkmcnt(4)")
    if not x & 1: qk(32, 4, 8)
    A(f"s_waitcnt lgkmcnt(0)\nds_write_b32 v19, v26 offset:{LCONS}")
    if not x & 1: qk(48, 4, 12); kscore()
    A(f"s_cmp_lt_u32 s56, {nk}\ns_cbranch_scc1 L_cl")
    rnd1(17)
    for r in range(8, 16): A(f"v_mov_b32 v{r}, 0")
    A(f"v_mul_f32 v18, s55, v17\nv_subrev_u32 v118, {nk*64}, v118\ns_branch L_cl")
    A(f"L_nok:\ns_cmp_ge_u32 s56, {nst}\ns_cbranch_scc1 L_mix\nds_read_b128 v[20:23], v118 offset:{LSC}")
    rd()
    A("v_add_u32 v118, 0x100, v118\ns_waitcnt lgkmcnt(8)")
    if not x & 1:
        for j in range(4): unpack(224 + 2 * j, 225 + 2 * j, 20 + j)
        for r in range(224, 232): A(f"v_fma_f32 v{r}, v{r}, s51, v18")
        for r in range(224, 232): A(f"v_exp_f32 v{r}, v{r}")
    A(f"s_waitcnt lgkmcnt(0)\nds_write_b32 v19, v26 offset:{LCONS}")
    if not x & 1:
        for r in range(224, 232): A(f"v_add_f32 v16, v16, v{r}")
        pv(32, 8, 224)
    A("s_branch L_cl\nL_mix:")
    rd()
    A("s_waitcnt lgkmcnt(4)")
    if not x & 1: qk(32, 4)
    A(f"s_waitcnt lgkmcnt(0)\nds_write_b32 v19, v26 offset:{LCONS}")
    if not x & 1: soft(4); pv(48, 4)
    A("s_branch L_cl")
    A(f"L_event:\ns_add_u32 s57, s57, {evd}\ns_add_u32 s92, s92, 1")
    for e in (2, 3, 4): A(f"s_cmp_eq_u32 s92, {e}\ns_cbranch_scc1 L_ev{e}")
    A("s_cmp_lt_u32 s69, 4\ns_cbranch_scc1 L_ldwo\ns_cmp_ge_u32 s68, 56\ns_cbranch_scc1 L_cl")
    A("s_movk_i32 s35, 3584\nv_mul_lo_u32 v70, s35, v65\ns_lshl_b32 s35, s68, 6\nv_add3_u32 v70, v70, v66, s35")
    srd(40, 16, 512 * 3584); tile_load(128, 70, 3584)
    A("s_branch L_cl\nL_ldwo:")
    A("s_lshr_b32 s35, s34, 4\ns_lshl_b32 s35, s35, 19"); srd(40, 12, 512 * 1024, "s35")
    A("s_and_b32 s35, s49, 0x3ff\nv_lshlrev_b32 v70, 10, v65\nv_add3_u32 v70, v70, v66, s35")
    tile_load(128, 70, 1024)
    A("s_branch L_cl")
    A("L_ev2:\ns_waitcnt vmcnt(0)")
    MW = tile_tr(128, 127)
    A("s_cmp_ge_u32 s68, 56\ns_cbranch_scc1 L_cl")
    srd(40, 18, 512 * 3584); tile_load(160, 70, 3584)
    A("s_branch L_cl")
    A("L_ev3:\ns_cmp_ge_u32 s68, 56\ns_cbranch_scc1 L_cl\ns_waitcnt vmcnt(0)")
    MU = tile_tr(160, 126)
    A("s_lshl_b32 s35, s68, 15"); srd(40, 20, 32 * 1024, "s35")
    A("v_lshrrev_b32 v70, 4, v0\nv_lshlrev_b32 v70, 13, v70\nv_and_b32 v71, 15, v0\nv_lshl_add_u32 v70, v71, 4, v70\ns_lshl_b32 s35, s33, 8\nv_add_u32 v70, s35, v70")
    tile_load(192, 70, 1024)
    A("s_branch L_cl")
    A("L_ev4:\ns_mov_b32 s57, -1")
    A("s_cmp_ge_u32 s68, 56\ns_cbranch_scc1 L_dry\ns_waitcnt vmcnt(0)")
    MD = tile_tr(192, 125)
    A("global_load_dword v76, v111, s[4:5]")
    A("s_lshl_b32 s35, s68, 2\ns_add_u32 s35, s35, s33\ns_lshl_b32 s90, s35, 4\ns_lshl_b32 s35, s35, 2\nv_lshrrev_b32 v116, 4, v0\nv_add_u32 v116, s35, v116")
    A("v_and_b32 v116, 0x1ff, v116\nv_lshrrev_b32 v117, 1, v116\nv_lshlrev_b32 v117, 3, v117")
    def l3():
        A(f"s_mov_b32 s48, {MODG+2*2048}\nbuffer_load_dwordx2 v[84:85], v110, s[36:39], s48 offen sc1\nbuffer_load_dwordx2 v[86:87], v110, s[36:39], s48 offen offset:2048 sc1")
        A(f"s_mov_b32 s48, {MODG+4*2048}\nbuffer_load_dwordx2 v[88:89], v110, s[36:39], s48 offen sc1")
        A(f"s_mov_b32 s48, {MODG+5*2048}\nbuffer_load_dwordx2 v[108:109], v117, s[36:39], s48 offen sc1")
    if not x & 8: poll(l3, lambda: chk_tags([85, 87, 89, 109], 100), 8)
    for r in (84, 86, 88, 76): unpack(r, r + 1, r)
    A("v_add_f32 v88, 1.0, v88\nv_add_f32 v89, 1.0, v89"); rndn([88, 89])
    unpack(109, 108, 108)
    A("v_and_b32 v117, 1, v116\nv_cmp_eq_u32 vcc, 1, v117\nv_cndmask_b32 v108, v109, v108, vcc\nv_lshlrev_b32 v116, 1, v116")
    if tch: A("buffer_load_ushort v117, v116, s[60:63], 0 offen")
    A("L_dry:")
    if dry:
        for r in (24, 25, 26, 28, 29, 30, 31): A(f"v_mov_b32 v{r}, 0")
    A("s_mov_b64 s[66:67], 0\ns_mov_b64 exec, 0" if dry else "s_branch L_cl")
    A("L_finish:")
    A("v_mov_b32 v26, v18"); xrows("v_min_f32", [(26, 24)])
    A("v_sub_f32 v24, v26, v18\nv_exp_f32 v24, v24")
    A(f"v_and_b32 v28, 15, v0\nv_lshrrev_b32 v29, 4, v0\nv_lshlrev_b32 v28, 5, v28\nv_lshl_add_u32 v28, v29, 3, v28\ns_lshl_b32 s35, s33, 9")
    for j in range(4): A(f"v_pk_mul_f32 v[{8+2*j}:{9+2*j}], v[{8+2*j}:{9+2*j}], v[24:25] op_sel_hi:[1,0]")
    A("v_mul_f32 v27, v16, v24\nv_add_u32 v28, s35, v28\nv_lshlrev_b32 v29, 1, v19")
    halve([list(range(8, 16))]); xrows("v_add_f32", [(27, 24)])
    A(f"ds_write_b64 v28, v[8:9] offset:{LPO}\nds_write_b64 v29, v[26:27] offset:{LML}")
    arrive(1, 4, "L_notlast")
    A("v_lshlrev_b32 v25, 3, v0")
    for k in range(2): A(f"ds_read_b128 v[{32+4*k}:{35+4*k}], v3 offset:{LML+16*k}")
    for k in range(4): A(f"ds_read_b64 v[{48+2*k}:{49+2*k}], v25 offset:{LPO+512*k}")
    A(f"s_lshl_b32 s48, s2, 10\ns_add_u32 s48, s48, {PART}\ns_waitcnt lgkmcnt(4)")
    A("v_min3_f32 v26, v32, v34, v36\nv_min_f32 v26, v26, v38")
    for k in range(4): A(f"v_sub_f32 v{32+2*k}, v26, v{32+2*k}")
    for k in range(4): A(f"v_exp_f32 v{32+2*k}, v{32+2*k}")
    A("s_waitcnt lgkmcnt(0)\nv_mul_f32 v27, v32, v33\nv_pk_mul_f32 v[28:29], v[48:49], v[32:33] op_sel_hi:[1,0]")
    for k in range(1, 4):
        A(f"v_fmac_f32 v27, v{32+2*k}, v{33+2*k}\nv_pk_fma_f32 v[28:29], v[{48+2*k}:{49+2*k}], v[{32+2*k}:{33+2*k}], v[28:29] op_sel_hi:[1,0,1]")
    for r in (28, 29, 26, 27): A(f"v_min_u32 v{r}, -2, v{r}")
    A("buffer_store_dwordx2 v[28:29], v119, s[36:39], s48 offen sc1")
    A("s_and_b64 exec, 1, s[66:67]\nbuffer_store_dwordx2 v[26:27], off, s[36:39], s48 offset:512 sc1\ns_mov_b64 exec, s[66:67]")
    A("L_notlast:")
    ST(4)
    A("s_cmp_lt_u32 s68, 56\ns_cbranch_scc1 L_ffn\ns_cmp_ge_u32 s69, 4\ns_cbranch_scc1 L_end")
    A(f"s_lshr_b32 s35, s34, 4\ns_lshl_b32 s35, s35, 2\ns_add_u32 s35, s35, s33\ns_lshl_b32 s35, s35, 13\ns_add_u32 s48, s35, {PART}")
    A(f"v_lshlrev_b32 v30, 7, v66\nv_and_b32 v31, {'0xff, v69' if pm & 1 else '0x1ff, v68'}\nv_add_u32 v31, v31, v30")
    def la():
        for p in range(2):
            A(f"buffer_load_dwordx2 v[{240+2*p}:{241+2*p}], v30, s[36:39], s48 offen offset:{1024*p+512} sc1")
            for h in range(2): A(f"buffer_load_dwordx4 v[{224+8*p+4*h}:{227+8*p+4*h}], v31, s[36:39], s48 offen offset:{1024*p+(256 if pm & 1 else 16)*h} sc1")
    poll2(la, 6, lambda: chk_sent(list(range(224, 244)), 24), wsl, dp & 3)
    ST(5)
    A("v_min_f32 v24, v240, v242"); quad("v_min_f32", [24])
    A("v_sub_f32 v48, v24, v240\nv_sub_f32 v50, v24, v242\nv_exp_f32 v48, v48\nv_exp_f32 v50, v50")
    A("v_mul_f32 v24, v48, v241\nv_fmac_f32 v24, v50, v243")
    for j in range(4): A(f"v_pk_mul_f32 v[{32+2*j}:{33+2*j}], v[{224+2*j}:{225+2*j}], v[48:49] op_sel_hi:[1,0]")
    for j in range(4): A(f"v_pk_fma_f32 v[{32+2*j}:{33+2*j}], v[{232+2*j}:{233+2*j}], v[50:51], v[{32+2*j}:{33+2*j}] op_sel_hi:[1,0,1]")
    quad("v_add_f32", [24] + list(range(32, 40)))
    A("v_rcp_f32 v24, v24")
    for j in range(4): A(f"v_pk_mul_f32 v[{32+2*j}:{33+2*j}], v[{32+2*j}:{33+2*j}], v[24:25] op_sel_hi:[1,0]")
    for j in range(4): A(f"v_cvt_pk_bf16_f32 v{72+j}, v{32+2*j}, v{33+2*j}")
    tile_dot(MW, 72, 8)
    gemv_tail(8, 2, "L_end")
    A(f"v_min_u32 v26, -2, v26\nv_min_u32 v27, -2, v27\ns_lshl_b32 s48, s34, 7\ns_add_u32 s48, s48, {YP}")
    if pm & 2: A("s_and_b32 s35, s49, 0x3ff\ns_sub_u32 s48, s48, s35")
    A(("" if rp else "s_and_b64 exec, 0xffff, s[66:67]\n") + "buffer_store_dwordx2 v[26:27], v120, s[36:39], s48 offen sc1")
    ST(6)
    A("s_branch L_end")
    A(f"L_ffn:\ns_mov_b32 s48, {YP}\nv_lshl_add_u32 v31, v66, 8, {'v69' if pm & 2 else 'v68'}")
    if rp: A(f"s_bfe_u32 s35, s68, {0x20000 + rsh}\ns_lshl_b32 s35, s35, 14\ns_add_u32 s48, s48, s35")
    if alt:
        A(f"s_xor_b32 s35, s48, {ax << 14}")
        for r in range(240, 256): A(f"v_mov_b32 v{r}, -1")
    if pa:
        A(f"s_and_b64 exec, 15, s[66:67]\nL_pa:\nbuffer_load_dword v32, v31, s[36:39], s48 offen sc1\ns_sub_u32 s59, s59, 1\ns_cbranch_scc1 L_end\ns_waitcnt vmcnt(0)")
        A(f"v_cmp_ne_u32 vcc, -1, v32\ns_cbranch_vccnz L_pad\ns_cbranch_execz L_pad\ns_sleep {asl}\ns_branch L_pa\nL_pad:\ns_mov_b64 exec, s[66:67]")
    for k in range(4): A(f"s_add_u32 s{44+k}, s48, {4096*k}")
    A(f"s_lshl_b32 s48, s68, 11\ns_lshl_b32 s35, s33, 9\ns_add_u32 s48, s48, s35\ns_add_u32 s48, s48, {DP}\nv_lshlrev_b32 v31, 11, v0")
    def lb():
        for k in range(8): A(f"buffer_load_dwordx2 v[{224+2*k}:{225+2*k}], v110, s[36:39], s{44+k//2} offen offset:{2048*(k&1)} sc1")
    poll(lb, lambda: chk_sent(list(range(224, 240)), 24), fsl)
    ST(5)
    for d, a_, b_ in ((224, 224, 226), (228, 228, 230), (232, 232, 234), (236, 236, 238), (224, 224, 228), (232, 232, 236), (32, 224, 232)):
        A(f"v_pk_add_f32 v[{d}:{d+1}], v[{a_}:{a_+1}], v[{b_}:{b_+1}]")
    def mod2(x_, c_, s_, o_):
        A(f"v_pk_mul_f32 v[{x_}:{x_+1}], v[{x_}:{x_+1}], v[{c_}:{c_+1}]"); rndn([x_, x_ + 1])
        A(f"v_pk_add_f32 v[{x_}:{x_+1}], v[{x_}:{x_+1}], v[{s_}:{s_+1}]\nv_cvt_pk_bf16_f32 v{o_}, v{x_}, v{x_+1}")
    rndn([32, 33]); mod2(32, 84, 76, 77)
    A(f"ds_write_b32 v111, v77 offset:{LX2}")
    A(f"s_waitcnt lgkmcnt(0)\ns_cbranch_execz L_nb1\ns_barrier\nL_nb1:\nds_read_b128 v[32:35], v1 offset:{LX2}\nds_read_u16 v109, v116 offset:{LX2}")
    unpack(76, 77, 77)
    A("s_waitcnt lgkmcnt(1)")
    ln_stats(32, 36, 46, 47)
    A("v_sub_f32 v76, v76, v46\nv_sub_f32 v77, v77, v46"); rndn([76, 77])
    A("v_mul_f32 v76, v76, v47\nv_mul_f32 v77, v77, v47"); rndn([76, 77])
    mod2(76, 88, 86, 76)
    for k in range(4): A(f"v_mov_b32_dpp v{72+k}, v76 quad_perm:[{k},{k},{k},{k}] {DPP}")
    tile_dot(MW, 72, 8); tile_dot(MU, 72, 16)
    halve([list(range(8, 16)), list(range(16, 24))]); ror("v_add_f32", [8, 9, 16, 17], [8, 4])
    A(f"ds_write_b64 v67, v[8:9] offset:{LRED}\nds_write_b64 v67, v[16:17] offset:{LRED+512}")
    A("s_waitcnt lgkmcnt(0)\ns_cbranch_execz L_nb2\ns_barrier\nL_nb2:")
    for k in range(4): A(f"ds_read2st64_b32 v[{32+2*k}:{33+2*k}], v{113 if k % 2 == 0 else 122} offset0:{LRED//256 + k//2} offset1:{LRED//256 + k//2 + 2}")
    A("s_waitcnt lgkmcnt(0)\nv_pk_add_f32 v[32:33], v[32:33], v[34:35]\nv_pk_add_f32 v[36:37], v[36:37], v[38:39]\nv_pk_add_f32 v[32:33], v[32:33], v[36:37]")
    rndn([32, 33])
    A("v_mul_f32 v34, v32, v32\nv_mul_f32 v34, 0x3d372713, v34\nv_fma_f32 v34, v34, v32, v32\nv_mul_f32 v34, 0xc0135761, v34")
    A("v_exp_f32 v34, v34\nv_add_f32 v34, 1.0, v34\nv_rcp_f32 v34, v34\nv_mul_f32 v34, v34, v32"); rnd1(34)
    A(f"v_mul_f32 v34, v34, v33\nv_cvt_pk_bf16_f32 v34, v34, v34\nds_write_b16 v112, v34 offset:{LA}\nds_read_b128 v[72:75], v114 offset:{LA}")
    A("s_waitcnt lgkmcnt(0)")
    tile_dot(MD, 72, 8)
    halve([list(range(8, 16))])
    A("v_min_u32 v8, -2, v8\nv_min_u32 v9, -2, v9\nbuffer_store_dwordx2 v[8:9], v115, s[36:39], s48 offen sc1")
    ST(6)
    A(f"s_cmp_ge_u32 s68, 32\ns_cbranch_scc1 L_end\ns_add_u32 s48, s90, {DP}")
    poll(lambda: A("buffer_load_dwordx4 v[32:35], v31, s[36:39], s48 offen sc1"), lambda: chk_sent([32, 33, 34, 35], 24), zsl)
    ST(7)
    halve([[32, 33, 34, 35]]); ror("v_add_f32", [32], [8, 4, 2, 1]); rnd1(32)
    A("v_mul_f32 v32, v32, v108"); rnd1(32)
    A("v_lshlrev_b32 v109, 16, v109\nv_add_f32 v32, v32, v109\nv_cvt_pk_bf16_f32 v32, v32, v32")
    A("s_and_b64 exec, s[64:65], s[66:67]\nbuffer_store_short v32, v116, s[60:63], 0 offen")
    A("s_or_b32 s35, s68, s33\ns_cbranch_scc1 L_end\ns_and_b64 exec, 1, s[66:67]\nv_mov_b32 v24, s32\nbuffer_store_dword v24, off, s[36:39], 0 sc1")
    A("L_end:")
    if dry: A("s_cmp_lg_u32 s66, 0\ns_cbranch_scc1 L_fin\ns_mov_b64 s[66:67], -1\ns_mov_b64 exec, -1\ns_branch L_cl\nL_fin:")
    if stamp:
        ST(8)
        A("s_mov_b64 exec, 1\ns_add_u32 s30, s30, 0x8000000\ns_addc_u32 s31, s31, 0\ns_lshl_b32 s35, s2, 3\ns_add_u32 s35, s35, s3\ns_lshl_b32 s35, s35, 7\nv_mov_b32 v3, s35\ns_waitcnt lgkmcnt(0)")
        for i in range(9): A(f"v_mov_b32 v4, s{70+2*i}\nv_mov_b32 v5, s{71+2*i}\nglobal_store_dwordx2 v3, v[4:5], s[30:31] offset:{8*i}")
    A("L_exit:\ns_endpgm")
    post = f""".section .rodata,"a"
.p2align 6
.amdhsa_kernel {NAME}_kernel
  .amdhsa_next_free_vgpr 256
  .amdhsa_next_free_sgpr 102
  .amdhsa_accum_offset 256
  .amdhsa_group_segment_fixed_size 0
  .amdhsa_kernarg_size 112
  .amdhsa_user_sgpr_count 2
  .amdhsa_user_sgpr_kernarg_segment_ptr 1
  .amdhsa_system_sgpr_workgroup_id_x 1
  .amdhsa_float_denorm_mode_32 3
.end_amdhsa_kernel
"""
    t = A.text(); i = t.index("L_finish:")
    import re
    u = re.sub(r"(buffer_store.*) sc1", lambda m: m.group(1) + " " + hs, t[i:]); u = re.sub(r"(buffer_load.*) sc1", lambda m: m.group(1) + " " + hl, u)
    return pre + t[:i] + u + post
if __name__ == "__main__":
    out = sys.argv[1]
    kw = {}
    for a in sys.argv[2:]:
        k, v = a.split("=")
        kw[k] = int(v) if v.lstrip("-").isdigit() else v
    open(out, "w").write(gen(**kw))
```

```python
import sys
from asmlib import Asm
NAME = "adaLN_cond__mha_block_cached__geglu_ffn__decode"
DPP = "row_mask:0xf bank_mask:0xf"
MODG, QG, PART, YP, DP, WSZ = 0x1000, 0x4000, 0x10000, 0x50000, 0x54000, 0x70000
LCNT, LPROD, LFLAG, LCONS, LRED, LX2, LA, LML, LPO, LBK = 0, 16, 24, 32, 512, 1536, 2560, 3072, 4096, 8192
TK = 0x8000
def gen(N=21, NS=19, nst=480, G=4, LK=4, stamp=False, wflag="nt", x=0, ev0=24, evd=24, psl=1, qsl=1, npre=4, dry=0, wsl=0, fsl=0, zsl=0, tch=1, mp=1, pa=1, ldry=1, peel=2, tm=2, pm=0, rp=0, rsh=0, alt=0, ax=1, D=0, tp=0, sw=0, sg=0, dp=0, dsl=8, asl=2, hs='sc1', hl='sc1'):
    hs = hs.replace('_', ' '); hl = hl.replace('_', ' ')
    A = Asm()
    DP = YP + (0x10000 if rp else 0x4000); WSZ = DP + 56 * 2048
    lds = LBK + NS * 8192
    NR = NS - 2; nk = nst // 2; LSC = 4096
    assert nk % 4 == 0 and LSC + nk * 64 <= LBK + 16384 and ev0 >= 4 * npre and ev0 + 3 * evd + 12 * sw + 60 * sg + 3 < nst
    hdr = open("cdna_kernels/" + NAME + ".s.ref").read().split("; Override launch")[0]
    pre = hdr + f"; @launch grid=(256,1,1) block=(320,1,1) lds={lds}\n"
    pre += f'.amdgcn_target "amdgcn-amd-amdhsa--gfx950"\n.text\n.globl {NAME}_kernel\n.p2align 8\n.type {NAME}_kernel,@function\n{NAME}_kernel:\n'
    uid = [0]
    def lab(p):
        uid[0] += 1; return f"L_{p}{uid[0]}"
    def ST(i):
        if stamp: A(f"s_memrealtime s[{70+2*i}:{71+2*i}]")
    def srd(d, base, size, off=None):
        if off is None: A(f"s_mov_b32 s{d}, s{base}\ns_mov_b32 s{d+1}, s{base+1}")
        else: A(f"s_add_u32 s{d}, s{base}, {off}\ns_addc_u32 s{d+1}, s{base+1}, 0")
        A(f"s_mov_b32 s{d+2}, {size}\ns_mov_b32 s{d+3}, 0x20000")
    def unpack(lo, hi, src):
        if hi == src: A(f"v_lshlrev_b32 v{lo}, 16, v{src}\nv_and_b32 v{hi}, s52, v{src}")
        else: A(f"v_and_b32 v{hi}, s52, v{src}\nv_lshlrev_b32 v{lo}, 16, v{src}")
    def rndn(rs):
        for a, b in zip(rs[::2], rs[1::2]): A(f"v_cvt_pk_bf16_f32 v{b}, v{a}, v{b}")
        for a, b in zip(rs[::2], rs[1::2]): unpack(a, b, b)
    def rnd1(a): A(f"v_cvt_pk_bf16_f32 v{a}, v{a}, v{a}\nv_lshlrev_b32 v{a}, 16, v{a}")
    def ror(op, rs, steps):
        for st in steps:
            for r in rs: A(f"{op}_dpp v{r}, v{r}, v{r} row_ror:{st} {DPP}")
    def quad(op, rs):
        for qp in ("[1,0,3,2]", "[2,3,0,1]"):
            for r in rs: A(f"{op}_dpp v{r}, v{r}, v{r} quad_perm:{qp} {DPP}")
    def xrows(op, pairs):
        for sw in ("v_permlane32_swap_b32", "v_permlane16_swap_b32"):
            for r, t in pairs: A(f"v_mov_b32 v{t}, v{r}")
            for r, t in pairs: A(f"{sw} v{r}, v{t}")
            for r, t in pairs: A(f"{op} v{r}, v{r}, v{t}")
    def halve(groups):
        for sw in ("v_permlane32_swap_b32", "v_permlane16_swap_b32"):
            for g in groups:
                for i in range(len(g) // 2): A(f"{sw} v{g[i]}, v{g[i+len(g)//2]}")
            for g in groups:
                for i in range(len(g) // 2): A(f"v_add_f32 v{g[i]}, v{g[i]}, v{g[i+len(g)//2]}")
            groups = [g[:len(g) // 2] for g in groups]
    def poll(loads, check, sleep=1):
        l = lab("poll"); d = lab("pdone")
        A(f"{l}:"); loads(); A("s_waitcnt vmcnt(0)"); check()
        A(f"s_cbranch_vccz {d}\n{'s_mov_b64 exec, vcc' if mp else ''}\ns_sub_u32 s59, s59, 1\ns_cbranch_scc1 L_end\n{'s_sleep %d' % sleep if sleep else ''}\ns_branch {l}\n{d}:")
        if mp: A("s_mov_b64 exec, s[66:67]")
    def poll2(loads, n, check, sleep, depth):
        if not depth: return poll(loads, check, sleep)
        l = lab("poll"); d = lab("pdone")
        for k in range(depth): loads(); A(f"s_sleep {dsl}")
        A(f"{l}:"); loads(); A(f"s_waitcnt vmcnt({n*depth})"); check()
        A(f"s_cbranch_vccz {d}\ns_mov_b64 exec, vcc\ns_sub_u32 s59, s59, 1\ns_cbranch_scc0 {l}\ns_branch L_end\n{d}:\ns_mov_b64 exec, s[66:67]")
    def chk_tags(rs, t):
        A(f"v_xor_b32 v{t}, s32, v{rs[0]}")
        for r in rs[1:]: A(f"v_xor_b32 v{r}, s32, v{r}")
        rr = rs[1:]
        while len(rr) >= 2: A(f"v_or3_b32 v{t}, v{t}, v{rr[0]}, v{rr[1]}"); rr = rr[2:]
        if rr: A(f"v_or_b32 v{t}, v{t}, v{rr[0]}")
        A(f"v_cmp_ne_u32 vcc, 0, v{t}")
    def chk_sent(rs, t):
        A(f"v_max_u32 v{t}, v{rs[0]}, v{rs[1]}"); rr = rs[2:]
        while len(rr) >= 2: A(f"v_max3_u32 v{t}, v{t}, v{rr[0]}, v{rr[1]}"); rr = rr[2:]
        A(f"v_cmp_eq_u32 vcc, -1, v{t}")
    def tile_load(wb, voff, stride):
        if x & 2 and stride < 6000: return
        for i in range(8):
            if i: A(f"s_mov_b32 s48, {i*stride}")
            A(f"buffer_load_dwordx4 v[{wb+4*i}:{wb+4*i+3}], v{voff}, s[40:43], {'s48' if i else '0'} offen {wflag}")
    def tile_tr(wb, spare):
        M = []
        for p in range(4):
            row = []
            for j in range(4):
                a, b = wb + 8 * p + j, wb + 8 * p + 4 + j
                A(f"v_perm_b32 v{spare}, v{b}, v{a}, s53\nv_perm_b32 v{b}, v{b}, v{a}, s54")
                row += [spare, b]; spare = a
            M.append(row)
        return M
    def tile_dot(M, act, acc):
        for p in range(4):
            for c in range(8): A(f"v_dot2_f32_bf16 v{acc+c}, v{M[p][c]}, v{act+p}, {'v%d' % (acc+c) if p else '0'}")
    def arrive(cnt, n, skip):
        A(f"s_waitcnt lgkmcnt(0)\ns_and_b64 exec, 1, s[66:67]\nv_mov_b32 v24, 1\nv_mov_b32 v25, {LCNT+4*cnt}")
        A(f"ds_add_rtn_u32 v24, v25, v24\ns_waitcnt lgkmcnt(0)\nv_readfirstlane_b32 s35, v24\ns_mov_b64 exec, s[66:67]")
        A(f"s_xor_b32 s35, s35, {n-1}\ns_and_b32 s35, s35, s66\ns_cbranch_scc1 {skip}")
    def gemv_tail(acc, cnt, skip):
        halve([list(range(acc, acc + 8))]); ror("v_add_f32", [acc, acc + 1], [8, 4])
        A(f"ds_write_b64 v67, v[{acc}:{acc+1}] offset:{LRED}")
        arrive(cnt, 4, skip)
        A("v_and_b32 v24, 15, v0\nv_lshlrev_b32 v24, 3, v24")
        for k in range(4): A(f"ds_read_b64 v[{26+2*k}:{27+2*k}], v24 offset:{LRED+128*k}")
        A("s_waitcnt lgkmcnt(0)\nv_pk_add_f32 v[26:27], v[26:27], v[28:29]\nv_pk_add_f32 v[30:31], v[30:31], v[32:33]\nv_pk_add_f32 v[26:27], v[26:27], v[30:31]")
    def ln_stats(src, t, mo, ro):
        for j in range(4): unpack(t + 2 * j, t + 2 * j + 1, src + j)
        A(f"v_pk_add_f32 v[{mo}:{ro}], v[{t}:{t+1}], v[{t+2}:{t+3}]\nv_pk_add_f32 v[{t+8}:{t+9}], v[{t+4}:{t+5}], v[{t+6}:{t+7}]")
        A(f"v_pk_add_f32 v[{mo}:{ro}], v[{mo}:{ro}], v[{t+8}:{t+9}]\nv_add_f32 v{mo}, v{mo}, v{ro}")
        ror("v_add_f32", [mo], [8, 4, 2, 1]); xrows("v_add_f32", [(mo, t + 8)])
        A(f"v_mul_f32 v{mo}, 0x3b000000, v{mo}")
        for j in range(0, 8, 2): A(f"v_pk_add_f32 v[{t+j}:{t+j+1}], v[{t+j}:{t+j+1}], v[{mo}:{ro}] op_sel_hi:[1,0] neg_lo:[0,1] neg_hi:[0,1]")
        A(f"v_pk_mul_f32 v[{t}:{t+1}], v[{t}:{t+1}], v[{t}:{t+1}]")
        for j in range(2, 8, 2): A(f"v_pk_fma_f32 v[{t}:{t+1}], v[{t+j}:{t+j+1}], v[{t+j}:{t+j+1}], v[{t}:{t+1}]")
        A(f"v_add_f32 v{ro}, v{t}, v{t+1}")
        ror("v_add_f32", [ro], [8, 4, 2, 1]); xrows("v_add_f32", [(ro, t + 8)])
        A(f"v_mul_f32 v{ro}, 0x3b000000, v{ro}")
        rndn([mo, ro])
        A(f"v_add_f32 v{ro}, 0x3727c5ac, v{ro}"); rnd1(ro)
        A(f"v_sqrt_f32 v{ro}, v{ro}"); rnd1(ro)
        A(f"v_rcp_f32 v{ro}, v{ro}")
    def ln_norm(x, mo, ro):
        X = list(range(x, x + 8))
        for r in X: A(f"v_sub_f32 v{r}, v{r}, v{mo}")
        rndn(X)
        for r in X: A(f"v_mul_f32 v{r}, v{r}, v{ro}")
        rndn(X)
    def modulate(x, c1, s, out):
        for j in range(8): A(f"v_mul_f32 v{x+j}, v{x+j}, v{c1+j}")
        rndn(list(range(x, x + 8)))
        for j in range(8): A(f"v_add_f32 v{x+j}, v{x+j}, v{s+j}")
        for j in range(4): A(f"v_cvt_pk_bf16_f32 v{out+j}, v{x+2*j}, v{x+2*j+1}")
    def get_mod(sec, dst):
        A(f"s_mov_b32 s48, {MODG + sec*2048}")
        A(f"buffer_load_dwordx4 v[{dst}:{dst+3}], v68, s[36:39], s48 offen sc1\nbuffer_load_dwordx4 v[{dst+4}:{dst+7}], v68, s[36:39], s48 offen offset:16 sc1")
    def granule_unpack(d, plus1=False):
        for j in range(4): unpack(d + 2 * j, d + 2 * j + 1, d + 2 * j)
        if plus1:
            for j in range(8): A(f"v_add_f32 v{d+j}, 1.0, v{d+j}")
            rndn(list(range(d, d + 8)))
    def qk(kb, n, xb=20):
        for t in range(4):
            for i in range(n): A(f"v_dot2_f32_bf16 v{xb+i}, v{kb+4*i+t}, v{4+t}, {'v%d' % (xb+i) if t else '0'}")
    def soft(n):
        X = list(range(20, 20 + n))
        ror("v_add_f32", X, [8, 4, 2, 1])
        rndn(X)
        for r in X: A(f"v_mul_f32 v{r}, s58, v{r}")
        rndn(X)
        if n == 4: A("v_max3_f32 v24, v20, v21, v22\nv_max3_f32 v24, v24, v23, v17")
        else: A("v_max3_f32 v24, v20, v21, v17")
        sk = lab("nors")
        A(f"v_cmp_gt_f32 vcc, v24, v17\ns_cbranch_vccz {sk}")
        A("v_mov_b32 v17, v24\nv_mul_f32 v25, s55, v24\nv_sub_f32 v24, v25, v18\nv_exp_f32 v24, v24\nv_mov_b32 v18, v25")
        for j in range(4): A(f"v_pk_mul_f32 v[{8+2*j}:{9+2*j}], v[{8+2*j}:{9+2*j}], v[24:25] op_sel_hi:[1,0]")
        A(f"v_mul_f32 v16, v16, v24\n{sk}:")
        for r in X: A(f"v_fma_f32 v{r}, v{r}, s51, v18")
        for r in X: A(f"v_exp_f32 v{r}, v{r}")
        for r in X: A(f"v_add_f32 v16, v16, v{r}")
    def pv(vb, n, pb=20):
        for i in range(n):
            for j in range(4): unpack(24 + 2 * j, 25 + 2 * j, vb + 4 * i + j)
            e = pb + (i & ~1)
            sel = "op_sel:[0,1,0] op_sel_hi:[1,1,1]" if i & 1 else "op_sel_hi:[1,0,1]"
            for j in range(4): A(f"v_pk_fma_f32 v[{8+2*j}:{9+2*j}], v[{24+2*j}:{25+2*j}], v[{e}:{e+1}], v[{8+2*j}:{9+2*j}] {sel}")
    def kscore():
        X = list(range(8, 16))
        ror("v_add_f32", X, [8, 4, 2, 1]); rndn(X)
        for r in X: A(f"v_mul_f32 v{r}, s58, v{r}")
        for j in range(4): A(f"v_cvt_pk_bf16_f32 v{20+j}, v{8+2*j}, v{9+2*j}")
        for j in range(4): A(f"v_max3_f32 v17, v{8+2*j}, v{9+2*j}, v17")
        A(f"s_mov_b64 exec, s[64:65]\nds_write_b128 v118, v[20:23] offset:{LSC}\ns_mov_b64 exec, -1\nv_add_u32 v118, 0x100, v118")
    def att_init():
        for r in range(8, 17): A(f"v_mov_b32 v{r}, 0")
        A("v_mov_b32 v17, 0xf149f2ca\nv_mul_f32 v18, s55, v17")

    def roles():
        A("s_sub_u32 s33, s3, 1\ns_lshr_b32 s48, s91, 1\ns_add_u32 s69, s35, s48\ns_and_b32 s69, s69, 7")
        A("s_lshl_b32 s48, s48, 2\ns_add_u32 s48, s48, s69\ns_lshl_b32 s48, s48, 1\ns_and_b32 s35, s91, 1\ns_or_b32 s34, s48, s35")
        A("s_sub_u32 s48, s69, 4\ns_lshl_b32 s48, s48, 5\ns_add_u32 s48, s48, s91\ns_cmp_ge_u32 s69, 4\ns_cselect_b32 s34, s48, s34")
        if tm & 1: A("s_and_b32 s34, s69, 3\ns_lshl_b32 s34, s34, 5\ns_add_u32 s34, s34, s91")
        A("s_sub_u32 s68, 7, s69\ns_lshl_b32 s68, s68, 5\ns_add_u32 s68, s68, s91")
        A("s_mov_b32 s53, 0x05040100\ns_mov_b32 s54, 0x07060302\ns_mov_b32 s51, 0x3fb8aa3b\ns_mov_b32 s55, 0xbfb8aa3b\ns_mov_b32 s52, 0xffff0000\ns_mov_b32 s58, 0x3db504f3")
    A("s_cmp_ge_u32 s2, 256\ns_cbranch_scc1 L_exit")
    A("s_load_dwordx16 s[4:19], s[0:1], 0\ns_load_dwordx8 s[20:27], s[0:1], 64\ns_load_dwordx4 s[28:31], s[0:1], 96")
    ST(0)
    if stamp:
        for i in range(1, 9): A(f"s_mov_b64 s[{70+2*i}:{71+2*i}], 0")
    A(f"v_lshrrev_b32 v1, 6, v0\nv_and_b32 v0, 63, v0\nv_mov_b32 v4, 0\nv_readfirstlane_b32 s3, v1")
    A(f"v_mov_b32 v5, 0\nv_mov_b32 v6, 0\nv_mov_b32 v7, 0\nv_mov_b32 v3, 0\nds_write_b128 v3, v[4:7] offset:{LCNT}\nds_write_b128 v3, v[4:7] offset:{LCONS}")
    A(f"v_bfrev_b32 v5, -2\nds_write_b128 v3, v[4:7] offset:{LPROD}")
    A("s_mov_b64 s[66:67], -1\ns_mov_b32 s59, 0x40000\nv_lshlrev_b32 v1, 4, v0\ns_lshr_b32 s91, s2, 3\ns_and_b32 s35, s2, 7")
    A("s_cmp_lg_u32 s3, 0\ns_waitcnt lgkmcnt(0)\ns_cbranch_scc1 L_cons")
    js = (N - 2) % 8
    A("s_setprio 3\ns_lshl_b32 s48, s35, 21\ns_lshl_b32 s35, s91, 24")
    A("s_mov_b32 s94, s35\ns_add_u32 s95, s94, 4096\ns_mov_b32 s96, s48")
    srd(40, 6, 1 << 24, "s94"); srd(44, 6, (1 << 24) - 4096, "s95")
    A(f"s_mov_b32 s89, {nk}\ns_movk_i32 s88, 8192")
    for q in range(2 * peel):
        A(f"s_mov_b32 m0, {LBK + 4096 * q}")
        for j in range(4): A(f"buffer_load_dwordx4 v1, s[40:43], s48 offen offset:{j*1024} nt lds")
        A("s_add_u32 s48, s48, 4096")
    A(f"s_mov_b32 s49, {nst - peel}\ns_mov_b32 s50, {LBK + 8192 * peel}\ns_mov_b32 s56, {peel}\ns_mov_b32 s57, {NS}\nv_mov_b32 v2, {(js + 2 - N)//8 - 1 + peel}")
    A(f"s_lshl_b32 s35, s91, 8\ns_add_u32 s35, s35, {TK}"); srd(36, 30, 256, "s35")
    if stamp: A("s_mov_b32 s93, 16")
    A("s_barrier")
    A(f"L_ll:\ns_cmp_ge_u32 s56, s57\ns_cbranch_scc1 L_lstall\ns_mov_b32 m0, s50")
    ngr = 8 * (512 - nst) // G
    over = {0: f"ds_read_b128 v[4:7], v3 offset:{LCONS}\ns_add_u32 s56, s56, 1",
            1: (f"s_cmp_eq_u32 s49, {LK}\ns_cbranch_scc1 L_tk\nL_tkr:" if ngr else ""),
            2: ("s_cmp_eq_u32 s56, s93\ns_cbranch_scc1 L_st\nL_str:" if stamp else ""),
            3: "s_add_u32 m0, s50, 4096\ns_add_u32 s50, s50, 8192",
            4: f"s_cmp_eq_u32 s50, {lds}\ns_cselect_b32 s50, {LBK+16384}, s50",
            5: "s_waitcnt lgkmcnt(0)\nv_min3_u32 v4, v4, v5, v6\nv_min_u32 v4, v4, v7",
            6: f"v_readfirstlane_b32 s57, v4\ns_add_u32 s57, s57, {NR}\ns_max_u32 s57, s57, {NS}",
            7: "s_add_u32 s48, s48, s88\ns_sub_u32 s49, s49, 1\ns_cmp_lg_u32 s49, s89"}
    for j in range(8):
        A(f"buffer_load_dwordx4 v1, s[{40+4*(j//4)}:{43+4*(j//4)}], s48 offen offset:{(j%4)*1024} nt lds")
        if j == js: A("v_add_u32 v2, 1, v2")
        A(over.get(j, ""))
        A(f"s_waitcnt vmcnt({N-1})")
        if j == js: A(f"ds_write_b32 v3, v2 offset:{LPROD}")
    A("s_cbranch_scc1 L_ll\ns_cmp_eq_u32 s89, 0\ns_cbranch_scc1 L_tick")
    srd(40, 8, 1 << 24, "s94"); srd(44, 8, (1 << 24) - 4096, "s95")
    A("s_mov_b32 s89, 0\ns_mov_b32 s48, s96\ns_branch L_ll\nL_tick:")
    if ngr: srd(40, 6, 1 << 24, "s94"); srd(44, 8, 1 << 24, "s94"); A("s_movk_i32 s88, 4096")
    if ngr:
        assert LK * 8 - 2 >= N - 1 and LK <= G
        A(f"v_readfirstlane_b32 s48, v8\ns_cmp_ge_u32 s48, {ngr}\ns_cbranch_scc1 L_ldone\ns_mov_b32 s97, s48")
        A(f"s_and_b32 s35, s48, 7\ns_lshr_b32 s48, s48, 3\ns_mul_i32 s48, s48, {G*4096}\ns_lshl_b32 s35, s35, 21\ns_add_u32 s48, s48, {nst*4096}\ns_add_u32 s48, s48, s35\ns_mov_b32 s49, {G}")
        if D:
            assert LK == G and 16 * G + 1 < 64 and (N - 1) // 8 == G - 1
            A(f"s_cmp_lt_u32 s97, {ngr - D}\ns_cbranch_scc1 L_ll\ns_add_u32 s35, s56, {G}\ns_cmp_gt_u32 s35, s57\ns_cbranch_scc1 L_ll")
            A(f"v_mov_b32 v8, 1\ns_mov_b64 exec, 1\nbuffer_atomic_add v8, off, s[36:39], 0 sc0 sc1\ns_mov_b64 exec, -1\ns_mov_b32 s56, s35\nv_add_u32 v2, {G}, v2")
            for it in range(G):
                for kv in range(2):
                    A(f"s_add_u32 m0, s50, {4096*kv}")
                    for j in range(4): A(f"buffer_load_dwordx4 v1, s[{40+4*kv}:{43+4*kv}], s48 offen offset:{j*1024} nt lds")
                A(f"s_add_u32 s50, s50, 8192\ns_add_u32 s48, s48, 4096\ns_cmp_eq_u32 s50, {lds}\ns_cselect_b32 s50, {LBK+16384}, s50")
            A("v_mov_b32 v9, s56")
            for k in range(2 * G - 1, G - 1, -1): A(f"v_subrev_u32 v10, {k}, v9\ns_waitcnt vmcnt({8*k})\nds_write_b32 v3, v10 offset:{LPROD}")
            A(f"ds_read_b128 v[4:7], v3 offset:{LCONS}\ns_waitcnt lgkmcnt(0)\nv_min3_u32 v4, v4, v5, v6\nv_min_u32 v4, v4, v7\nv_readfirstlane_b32 s57, v4\ns_add_u32 s57, s57, {NR}\ns_branch L_tick")
        else: A("s_branch L_ll")
        A("L_tk:\nv_mov_b32 v8, 1\ns_mov_b64 exec, 1\nbuffer_atomic_add v8, off, s[36:39], 0 sc0 sc1\ns_mov_b64 exec, -1\ns_branch L_tkr")
    A("L_ldone:")
    ST(1)
    A("v_mov_b32 v5, s56")
    for k in range((N - 1) // 8, -1, -1):
        A(f"v_subrev_u32 v4, {k}, v5\ns_waitcnt vmcnt({8*k})\nds_write_b64 v3, v[4:5] offset:{LPROD}")
    A("s_waitcnt lgkmcnt(0)")
    ST(3)
    if ldry:
        A("s_setprio 0\ns_and_b32 s35, s2, 7\ns_mov_b32 s3, 1"); roles(); srd(60, 26, 1024)
        for r in (24, 25, 26, 28, 30, 31, 66, 67, 68, 69, 110, 111, 112, 113, 114, 115, 116, 120, 122): A(f"v_mov_b32 v{r}, 0")
        A("s_mov_b32 s49, 0\ns_mov_b32 s3, 0\ns_mov_b32 s90, 0\ns_mov_b32 s32, 0\ns_mov_b64 s[64:65], 0\ns_mov_b64 s[66:67], 0\ns_mov_b64 exec, 0\ns_branch L_notlast")
    else: A("s_branch L_end")
    if stamp:
        A("L_st:")
        pts = [16, 64, ev0 - 8, nst - 1]
        for i, p in enumerate(pts):
            A(f"s_cmp_lg_u32 s56, {p}\ns_cbranch_scc1 L_st{i}"); ST(4 + i); A(f"s_mov_b32 s93, {pts[i+1] if i < 3 else -1}\nL_st{i}:")
        A("s_branch L_str")
    A(f"L_lstall:")
    if stamp: A("s_cmp_lg_u32 s74, 0\ns_cbranch_scc1 L_ls2"); ST(2); A("L_ls2:")
    A(f"ds_read_b128 v[4:7], v3 offset:{LCONS}\ns_sub_u32 s59, s59, 1\ns_cbranch_scc1 L_end\ns_waitcnt lgkmcnt(0)")
    A(f"v_min3_u32 v4, v4, v5, v6\nv_min_u32 v4, v4, v7\nv_readfirstlane_b32 s57, v4\ns_add_u32 s57, s57, {NR}\ns_max_u32 s57, s57, {NS}\ns_branch L_ll")
    A("L_cons:")
    srd(36, 30, WSZ)
    A("buffer_load_dword v64, off, s[36:39], 0 sc1")
    roles()
    if ldry: A('s_setprio 1')
    A("v_lshrrev_b32 v65, 2, v0\nv_lshlrev_b32 v65, 3, v65\ns_lshl_b32 s35, s33, 7\nv_add_u32 v65, s35, v65")
    A("v_and_b32 v66, 3, v0\nv_lshlrev_b32 v66, 4, v66\nv_lshrrev_b32 v67, 4, v0\nv_lshlrev_b32 v67, 3, v67\nv_lshl_add_u32 v67, v66, 1, v67\nv_add_u32 v67, s35, v67")
    A("v_lshlrev_b32 v68, 2, v65\nv_lshlrev_b32 v69, 1, v65\ns_lshl_b32 s49, s34, 6")
    if x & 8: A("s_cmp_lg_u32 s69, 4\ns_cbranch_scc1 L_idle")
    A("s_cmp_lt_u32 s69, 4\ns_cbranch_scc1 L_qstage\ns_cmp_eq_u32 s69, 7\ns_cbranch_scc1 L_idle")
    A("s_cmp_lg_u32 s69, 4\ns_cbranch_scc1 L_noclr")
    for r in range(24, 28): A(f"v_mov_b32 v{r}, -1")
    A(f"s_lshl_b32 s35, s91, 2\ns_add_u32 s35, s35, s33\ns_mul_i32 s50, s35, {(WSZ - YP) // 128}\ns_add_u32 s50, s50, {YP}\nbuffer_store_dwordx4 v[24:27], v1, s[36:39], s50 offen sc1")
    A(f"s_lshl_b32 s48, s35, 11\ns_add_u32 s48, s48, {PART}\ns_mov_b32 exec_hi, 15")
    A(f"buffer_store_dwordx4 v[24:27], v1, s[36:39], s48 offen sc1\nbuffer_store_dwordx4 v[24:27], v1, s[36:39], s48 offen offset:1024 sc1")
    if rp: A("s_mov_b64 exec, 0xffffff\nbuffer_store_dwordx4 v[24:27], v1, s[36:39], s50 offen offset:1024 sc1")
    A(f"s_lshl_b32 s48, s35, 6\ns_add_u32 s48, s48, {TK}\ns_mov_b64 exec, 1\nbuffer_store_dword v3, off, s[36:39], s48 sc1\ns_mov_b64 exec, -1")
    A("L_noclr:")
    A("global_load_dwordx4 v[72:75], v69, s[22:23]")
    srd(40, 24, 512 * 6144)
    A("s_movk_i32 s35, 6144\nv_mul_lo_u32 v70, s35, v65\nv_add3_u32 v70, v70, v66, s49")
    tile_load(128, 70, 6144)
    A("s_barrier\ns_waitcnt vmcnt(8)")
    for j in range(4): unpack(76 + 2 * j, 77 + 2 * j, 72 + j)
    A("s_mov_b32 s35, 0xb2a57060")
    for j in range(8): A(f"v_mul_f32 v{84+j}, s55, v{76+j}")
    for j in range(8): A(f"v_fma_f32 v{92+j}, v{76+j}, s55, -v{84+j}")
    for j in range(8): A(f"v_exp_f32 v{84+j}, v{84+j}")
    for j in range(8): A(f"v_fmac_f32 v{92+j}, s35, v{76+j}")
    for j in range(8): A(f"v_min_f32 v{84+j}, 0x7e000000, v{84+j}")
    for j in range(8): A(f"v_mul_f32 v{92+j}, 0x3f317218, v{92+j}")
    for j in range(8): A(f"v_fmac_f32 v{84+j}, v{92+j}, v{84+j}")
    for j in range(8): A(f"v_add_f32 v{84+j}, 1.0, v{84+j}")
    for j in range(8): A(f"v_rcp_f32 v{92+j}, v{84+j}")
    for j in range(8): A(f"v_mul_f32 v{100+j}, v{76+j}, v{92+j}")
    for j in range(8): A(f"v_fma_f32 v{84+j}, -v{100+j}, v{84+j}, v{76+j}")
    for j in range(8): A(f"v_fma_f32 v{84+j}, v{84+j}, v{92+j}, v{100+j}")
    for j in range(4): A(f"v_cvt_pk_bf16_f32 v{72+j}, v{84+2*j}, v{85+2*j}")
    A(f"v_readfirstlane_b32 s32, v64\ns_add_u32 s32, s32, 0x9e3779b9\ns_mov_b32 s50, {MODG}\ns_waitcnt vmcnt(0)")
    M = tile_tr(128, 127)
    A("s_branch L_pgemv")
    A("L_qstage:")
    A("global_load_dwordx4 v[72:75], v69, s[4:5]\nglobal_load_dwordx4 v[92:95], v1, s[4:5]")
    srd(40, 10, 512 * 8192)
    A("v_lshlrev_b32 v70, 13, v65\nv_add3_u32 v70, v70, v66, s49")
    tile_load(128, 70, 8192)
    A("s_barrier\ns_waitcnt vmcnt(8)")
    ln_stats(92, 96, 106, 107)
    for j in range(4): unpack(76 + 2 * j, 77 + 2 * j, 72 + j)
    ln_norm(76, 106, 107)
    A(f"v_readfirstlane_b32 s32, v64\ns_add_u32 s32, s32, 0x9e3779b9\ns_mov_b32 s50, {QG}\ns_waitcnt vmcnt(0)")
    tile_tr(128, 127)
    poll(lambda: (get_mod(0, 84), get_mod(1, 92)), lambda: chk_tags([85, 87, 89, 91, 93, 95, 97, 99], 100))
    ST(1)
    granule_unpack(84); granule_unpack(92, True)
    modulate(76, 92, 84, 72)
    A("L_pgemv:")
    tile_dot(M, 72, 8)
    gemv_tail(8, 0, "L_getq")
    A("v_cvt_pk_bf16_f32 v26, v26, v27\nv_mov_b32 v27, s32\ns_lshl_b32 s35, s34, 7\ns_add_u32 s50, s50, s35")
    A("s_mov_b64 exec, 0xffff\nbuffer_store_dwordx2 v[26:27], v24, s[36:39], s50 offen sc1\ns_mov_b64 exec, -1\ns_branch L_getq")
    A("L_idle:\ns_barrier\ns_waitcnt vmcnt(0)\nv_readfirstlane_b32 s32, v64\ns_add_u32 s32, s32, 0x9e3779b9")
    A("L_getq:")
    ST(2)
    srd(60, 26, 1024); srd(40, 12, 0); A("v_mov_b32 v116, 0\nv_mov_b32 v70, 0\ns_mov_b32 s90, 0")
    att_init()
    if tm & 2: A("s_bfe_u32 s34, s91, 0x30001\ns_lshl_b32 s34, s34, 1\ns_lshr_b32 s35, s91, 4\ns_add_u32 s34, s34, s35\ns_lshl_b32 s34, s34, 2\ns_and_b32 s35, s69, 3\ns_add_u32 s34, s34, s35")
    if tm & 2: A("s_lshl_b32 s34, s34, 1\ns_and_b32 s35, s91, 1\ns_add_u32 s34, s34, s35\ns_lshl_b32 s49, s34, 6")
    A(f"s_lshl_b32 s48, s91, 9\ns_add_u32 s48, s48, {QG}\nv_and_b32 v24, 15, v0\nv_lshlrev_b32 v24, 5, v24")
    A(f"s_mov_b32 s56, s33\ns_mul_i32 s57, s33, {1 + 4 * sw}\ns_lshr_b32 s35, s91, 1\ns_mul_i32 s35, s35, {4 * sg}\ns_add_u32 s57, s57, s35\ns_add_u32 s57, s57, {ev0}\ns_lshl_b32 s50, s33, 13\ns_add_u32 s50, s50, {LBK}\ns_mov_b32 s92, 0\ns_lshl_b32 s35, s33, 2\nv_mov_b32 v19, s35")
    def adv(): A(f"v_add_u32 v2, s50, v1\ns_add_u32 s50, s50, 32768\ns_cmp_ge_u32 s50, {lds}\ns_cselect_b32 s35, {NR*8192}, 0\ns_sub_u32 s50, s50, s35")
    def rd(b=32):
        for i in range(8 if not x & 4 else 0): A(f"ds_read_b128 v[{b+4*i}:{b+3+4*i}], v2 offset:{i*1024}")
        A("s_add_u32 s56, s56, 4\nv_mov_b32 v26, s56")
    A("v_and_b32 v118, 48, v0\nv_lshl_add_u32 v118, v19, 4, v118\ns_mov_b32 s64, 0x10001\ns_mov_b32 s65, 0x10001")
    A("v_lshrrev_b32 v119, 2, v0\nv_lshlrev_b32 v119, 4, v119\nv_and_b32 v120, 1, v0\nv_lshl_add_u32 v119, v120, 3, v119\nv_and_b32 v120, 63, v119\nv_and_b32 v121, 2, v0")
    A("v_lshl_add_u32 v119, v121, 7, v119\nv_lshl_add_u32 v120, v121, 9, v120")
    if not pm & 1: A("v_lshlrev_b32 v119, 3, v0")
    if not pm & 2: A("v_and_b32 v120, 15, v0\nv_lshlrev_b32 v120, 3, v120")
    if rp: A("v_lshrrev_b32 v121, 4, v0\nv_lshl_add_u32 v120, v121, 14, v120")
    A("v_lshlrev_b32 v110, 3, v0\nv_lshl_add_u32 v110, v19, 7, v110\nv_lshrrev_b32 v111, 1, v110")
    A("v_and_b32 v112, 31, v0\nv_lshlrev_b32 v113, 2, v112\nv_add_u32 v122, 0x80, v113\nv_lshlrev_b32 v114, 4, v19\nv_lshl_add_u32 v112, v112, 1, v114")
    A("v_lshrrev_b32 v121, 4, v0\nv_lshl_add_u32 v114, v121, 4, v114\nv_and_b32 v115, 15, v0\nv_lshlrev_b32 v115, 5, v115\nv_lshl_add_u32 v115, v121, 3, v115")
    PB = [32, 224, 128, 160, 192][:npre]
    for b in PB:
        adv()
        A(f"L_pw{b}:\nds_read_b32 v25, v3 offset:{LPROD}\ns_sub_u32 s59, s59, 1\ns_cbranch_scc1 L_end\ns_waitcnt lgkmcnt(0)\nv_cmp_lt_i32 vcc, s56, v25\ns_cbranch_vccz L_pw{b}")
        rd(b)
        A(f"s_waitcnt lgkmcnt(0)\nds_write_b32 v19, v26 offset:{LCONS}")
    if not x & 8: poll(lambda: A("buffer_load_dwordx4 v[72:75], v24, s[36:39], s48 offen sc1\nbuffer_load_dwordx4 v[76:79], v24, s[36:39], s48 offen offset:16 sc1"), lambda: chk_tags([73, 75, 77, 79], 25), qsl)
    for j in range(4): A(f"v_mov_b32 v{4+j}, v{72+2*j}")
    ST(3)
    def touch(lbl):
        A(f"s_cmp_lg_u32 s33, 0\ns_cbranch_scc1 {lbl}\ns_lshl_b32 s35, s91, 24\nv_lshlrev_b32 v123, 21, v0\nv_add_u32 v123, {(2 << 20) - 64}, v123\ns_mov_b64 exec, 0xff")
        for base in (8, 6): srd(44, base, 1 << 24, "s35"); A(f"buffer_load_dword v124, v123, s[44:47], 0 offen nt")
        A(f"s_mov_b64 exec, -1\n{lbl}:")
    for b in PB:
        if not x & 1: qk(b, 8, 8); kscore()
    if tp & 1: touch("L_t1")
    A("L_cl:\ns_cmp_eq_u32 s56, s57\ns_cbranch_scc1 L_event")
    adv()
    A(f"L_cw:\nds_read_b64 v[24:25], v3 offset:{LPROD}\ns_waitcnt lgkmcnt(0)\nv_cmp_lt_i32 vcc, s56, v24\ns_cbranch_vccnz L_go")
    A(f"v_cmp_ge_i32 vcc, s56, v25\ns_cbranch_vccnz L_finish\ns_sub_u32 s59, s59, 1\ns_cbranch_scc1 L_end\ns_sleep {psl}\ns_branch L_cw")
    A(f"L_go:\ns_cmp_ge_u32 s56, {nk}\ns_cbranch_scc1 L_nok")
    rd()
    A("s_waitcnt lgkmcnt(4)")
    if not x & 1: qk(32, 4, 8)
    A(f"s_waitcnt lgkmcnt(0)\nds_write_b32 v19, v26 offset:{LCONS}")
    if not x & 1: qk(48, 4, 12); kscore()
    A(f"s_cmp_lt_u32 s56, {nk}\ns_cbranch_scc1 L_cl")
    rnd1(17)
    for r in range(8, 16): A(f"v_mov_b32 v{r}, 0")
    A(f"v_mul_f32 v18, s55, v17\nv_subrev_u32 v118, {nk*64}, v118\ns_branch L_cl")
    A(f"L_nok:\ns_cmp_ge_u32 s56, {nst}\ns_cbranch_scc1 L_mix\nds_read_b128 v[20:23], v118 offset:{LSC}")
    rd()
    A("v_add_u32 v118, 0x100, v118\ns_waitcnt lgkmcnt(8)")
    if not x & 1:
        for j in range(4): unpack(224 + 2 * j, 225 + 2 * j, 20 + j)
        for r in range(224, 232): A(f"v_fma_f32 v{r}, v{r}, s51, v18")
        for r in range(224, 232): A(f"v_exp_f32 v{r}, v{r}")
    A(f"s_waitcnt lgkmcnt(0)\nds_write_b32 v19, v26 offset:{LCONS}")
    if not x & 1:
        for r in range(224, 232): A(f"v_add_f32 v16, v16, v{r}")
        pv(32, 8, 224)
    A("s_branch L_cl\nL_mix:")
    rd()
    A("s_waitcnt lgkmcnt(4)")
    if not x & 1: qk(32, 4)
    A(f"s_waitcnt lgkmcnt(0)\nds_write_b32 v19, v26 offset:{LCONS}")
    if not x & 1: soft(4); pv(48, 4)
    A("s_branch L_cl")
    A(f"L_event:\ns_add_u32 s57, s57, {evd}\ns_add_u32 s92, s92, 1")
    for e in (2, 3, 4): A(f"s_cmp_eq_u32 s92, {e}\ns_cbranch_scc1 L_ev{e}")
    A("s_cmp_lt_u32 s69, 4\ns_cbranch_scc1 L_ldwo\ns_cmp_ge_u32 s68, 56\ns_cbranch_scc1 L_cl")
    A("s_movk_i32 s35, 3584\nv_mul_lo_u32 v70, s35, v65\ns_lshl_b32 s35, s68, 6\nv_add3_u32 v70, v70, v66, s35")
    srd(40, 16, 512 * 3584); tile_load(128, 70, 3584)
    A("s_branch L_cl\nL_ldwo:")
    A("s_lshr_b32 s35, s34, 4\ns_lshl_b32 s35, s35, 19"); srd(40, 12, 512 * 1024, "s35")
    A("s_and_b32 s35, s49, 0x3ff\nv_lshlrev_b32 v70, 10, v65\nv_add3_u32 v70, v70, v66, s35")
    tile_load(128, 70, 1024)
    A("s_branch L_cl")
    A("L_ev2:\ns_waitcnt vmcnt(0)")
    MW = tile_tr(128, 127)
    A("s_cmp_ge_u32 s68, 56\ns_cbranch_scc1 L_cl")
    srd(40, 18, 512 * 3584); tile_load(160, 70, 3584)
    A("s_branch L_cl")
    A("L_ev3:\ns_cmp_ge_u32 s68, 56\ns_cbranch_scc1 L_cl\ns_waitcnt vmcnt(0)")
    MU = tile_tr(160, 126)
    A("s_lshl_b32 s35, s68, 15"); srd(40, 20, 32 * 1024, "s35")
    A("v_lshrrev_b32 v70, 4, v0\nv_lshlrev_b32 v70, 13, v70\nv_and_b32 v71, 15, v0\nv_lshl_add_u32 v70, v71, 4, v70\ns_lshl_b32 s35, s33, 8\nv_add_u32 v70, s35, v70")
    tile_load(192, 70, 1024)
    A("s_branch L_cl")
    A("L_ev4:\ns_mov_b32 s57, -1")
    if tp & 2: touch("L_t2")
    A("s_cmp_ge_u32 s68, 56\ns_cbranch_scc1 L_dry\ns_waitcnt vmcnt(0)")
    MD = tile_tr(192, 125)
    A("global_load_dword v76, v111, s[4:5]")
    A("s_lshl_b32 s35, s68, 2\ns_add_u32 s35, s35, s33\ns_lshl_b32 s90, s35, 4\ns_lshl_b32 s35, s35, 2\nv_lshrrev_b32 v116, 4, v0\nv_add_u32 v116, s35, v116")
    A("v_and_b32 v116, 0x1ff, v116\nv_lshrrev_b32 v117, 1, v116\nv_lshlrev_b32 v117, 3, v117")
    def l3():
        A(f"s_mov_b32 s48, {MODG+2*2048}\nbuffer_load_dwordx2 v[84:85], v110, s[36:39], s48 offen sc1\nbuffer_load_dwordx2 v[86:87], v110, s[36:39], s48 offen offset:2048 sc1")
        A(f"s_mov_b32 s48, {MODG+4*2048}\nbuffer_load_dwordx2 v[88:89], v110, s[36:39], s48 offen sc1")
        A(f"s_mov_b32 s48, {MODG+5*2048}\nbuffer_load_dwordx2 v[108:109], v117, s[36:39], s48 offen sc1")
    if not x & 8: poll(l3, lambda: chk_tags([85, 87, 89, 109], 100), 8)
    for r in (84, 86, 88, 76): unpack(r, r + 1, r)
    A("v_add_f32 v88, 1.0, v88\nv_add_f32 v89, 1.0, v89"); rndn([88, 89])
    unpack(109, 108, 108)
    A("v_and_b32 v117, 1, v116\nv_cmp_eq_u32 vcc, 1, v117\nv_cndmask_b32 v108, v109, v108, vcc\nv_lshlrev_b32 v116, 1, v116")
    if tch: A("buffer_load_ushort v117, v116, s[60:63], 0 offen")
    A("L_dry:")
    if dry:
        for r in (24, 25, 26, 28, 29, 30, 31): A(f"v_mov_b32 v{r}, 0")
    A("s_mov_b64 s[66:67], 0\ns_mov_b64 exec, 0" if dry else "s_branch L_cl")
    A("L_finish:")
    A("v_mov_b32 v26, v18"); xrows("v_min_f32", [(26, 24)])
    A("v_sub_f32 v24, v26, v18\nv_exp_f32 v24, v24")
    A(f"v_and_b32 v28, 15, v0\nv_lshrrev_b32 v29, 4, v0\nv_lshlrev_b32 v28, 5, v28\nv_lshl_add_u32 v28, v29, 3, v28\ns_lshl_b32 s35, s33, 9")
    for j in range(4): A(f"v_pk_mul_f32 v[{8+2*j}:{9+2*j}], v[{8+2*j}:{9+2*j}], v[24:25] op_sel_hi:[1,0]")
    A("v_mul_f32 v27, v16, v24\nv_add_u32 v28, s35, v28\nv_lshlrev_b32 v29, 1, v19")
    halve([list(range(8, 16))]); xrows("v_add_f32", [(27, 24)])
    A(f"ds_write_b64 v28, v[8:9] offset:{LPO}\nds_write_b64 v29, v[26:27] offset:{LML}")
    arrive(1, 4, "L_notlast")
    A("v_lshlrev_b32 v25, 3, v0")
    for k in range(2): A(f"ds_read_b128 v[{32+4*k}:{35+4*k}], v3 offset:{LML+16*k}")
    for k in range(4): A(f"ds_read_b64 v[{48+2*k}:{49+2*k}], v25 offset:{LPO+512*k}")
    A(f"s_lshl_b32 s48, s2, 10\ns_add_u32 s48, s48, {PART}\ns_waitcnt lgkmcnt(4)")
    A("v_min3_f32 v26, v32, v34, v36\nv_min_f32 v26, v26, v38")
    for k in range(4): A(f"v_sub_f32 v{32+2*k}, v26, v{32+2*k}")
    for k in range(4): A(f"v_exp_f32 v{32+2*k}, v{32+2*k}")
    A("s_waitcnt lgkmcnt(0)\nv_mul_f32 v27, v32, v33\nv_pk_mul_f32 v[28:29], v[48:49], v[32:33] op_sel_hi:[1,0]")
    for k in range(1, 4):
        A(f"v_fmac_f32 v27, v{32+2*k}, v{33+2*k}\nv_pk_fma_f32 v[28:29], v[{48+2*k}:{49+2*k}], v[{32+2*k}:{33+2*k}], v[28:29] op_sel_hi:[1,0,1]")
    for r in (28, 29, 26, 27): A(f"v_min_u32 v{r}, -2, v{r}")
    A("buffer_store_dwordx2 v[28:29], v119, s[36:39], s48 offen sc1")
    A("s_and_b64 exec, 1, s[66:67]\nbuffer_store_dwordx2 v[26:27], off, s[36:39], s48 offset:512 sc1\ns_mov_b64 exec, s[66:67]")
    A("L_notlast:")
    ST(4)
    A("s_cmp_lt_u32 s68, 56\ns_cbranch_scc1 L_ffn\ns_cmp_ge_u32 s69, 4\ns_cbranch_scc1 L_end")
    A(f"s_lshr_b32 s35, s34, 4\ns_lshl_b32 s35, s35, 2\ns_add_u32 s35, s35, s33\ns_lshl_b32 s35, s35, 13\ns_add_u32 s48, s35, {PART}")
    A(f"v_lshlrev_b32 v30, 7, v66\nv_and_b32 v31, {'0xff, v69' if pm & 1 else '0x1ff, v68'}\nv_add_u32 v31, v31, v30")
    def la():
        for p in range(2):
            A(f"buffer_load_dwordx2 v[{240+2*p}:{241+2*p}], v30, s[36:39], s48 offen offset:{1024*p+512} sc1")
            for h in range(2): A(f"buffer_load_dwordx4 v[{224+8*p+4*h}:{227+8*p+4*h}], v31, s[36:39], s48 offen offset:{1024*p+(256 if pm & 1 else 16)*h} sc1")
    poll2(la, 6, lambda: chk_sent(list(range(224, 244)), 24), wsl, dp & 3)
    ST(5)
    A("v_min_f32 v24, v240, v242"); quad("v_min_f32", [24])
    A("v_sub_f32 v48, v24, v240\nv_sub_f32 v50, v24, v242\nv_exp_f32 v48, v48\nv_exp_f32 v50, v50")
    A("v_mul_f32 v24, v48, v241\nv_fmac_f32 v24, v50, v243")
    for j in range(4): A(f"v_pk_mul_f32 v[{32+2*j}:{33+2*j}], v[{224+2*j}:{225+2*j}], v[48:49] op_sel_hi:[1,0]")
    for j in range(4): A(f"v_pk_fma_f32 v[{32+2*j}:{33+2*j}], v[{232+2*j}:{233+2*j}], v[50:51], v[{32+2*j}:{33+2*j}] op_sel_hi:[1,0,1]")
    quad("v_add_f32", [24] + list(range(32, 40)))
    A("v_rcp_f32 v24, v24")
    for j in range(4): A(f"v_pk_mul_f32 v[{32+2*j}:{33+2*j}], v[{32+2*j}:{33+2*j}], v[24:25] op_sel_hi:[1,0]")
    for j in range(4): A(f"v_cvt_pk_bf16_f32 v{72+j}, v{32+2*j}, v{33+2*j}")
    tile_dot(MW, 72, 8)
    gemv_tail(8, 2, "L_end")
    A(f"v_min_u32 v26, -2, v26\nv_min_u32 v27, -2, v27\ns_lshl_b32 s48, s34, 7\ns_add_u32 s48, s48, {YP}")
    if pm & 2: A("s_and_b32 s35, s49, 0x3ff\ns_sub_u32 s48, s48, s35")
    A(("" if rp else "s_and_b64 exec, 0xffff, s[66:67]\n") + "buffer_store_dwordx2 v[26:27], v120, s[36:39], s48 offen sc1")
    ST(6)
    A("s_branch L_end")
    A(f"L_ffn:\ns_mov_b32 s48, {YP}\nv_lshl_add_u32 v31, v66, 8, {'v69' if pm & 2 else 'v68'}")
    if rp: A(f"s_bfe_u32 s35, s68, {0x20000 + rsh}\ns_lshl_b32 s35, s35, 14\ns_add_u32 s48, s48, s35")
    if alt:
        A(f"s_xor_b32 s35, s48, {ax << 14}")
        for r in range(240, 256): A(f"v_mov_b32 v{r}, -1")
    if pa:
        A(f"s_and_b64 exec, 15, s[66:67]\nL_pa:\nbuffer_load_dword v32, v31, s[36:39], s48 offen sc1\ns_sub_u32 s59, s59, 1\ns_cbranch_scc1 L_end\ns_waitcnt vmcnt(0)")
        A(f"v_cmp_ne_u32 vcc, -1, v32\ns_cbranch_vccnz L_pad\ns_cbranch_execz L_pad\ns_sleep {asl}\ns_branch L_pa\nL_pad:\ns_mov_b64 exec, s[66:67]")
    for k in range(4): A(f"s_add_u32 s{44+k}, s48, {4096*k}")
    A(f"s_lshl_b32 s48, s68, 11\ns_lshl_b32 s35, s33, 9\ns_add_u32 s48, s48, s35\ns_add_u32 s48, s48, {DP}\nv_lshlrev_b32 v31, 11, v0")
    def lb():
        for k in range(8): A(f"buffer_load_dwordx2 v[{224+2*k}:{225+2*k}], v110, s[36:39], s{44+k//2} offen offset:{2048*(k&1)} sc1")
    poll(lb, lambda: chk_sent(list(range(224, 240)), 24), fsl)
    ST(5)
    for d, a_, b_ in ((224, 224, 226), (228, 228, 230), (232, 232, 234), (236, 236, 238), (224, 224, 228), (232, 232, 236), (32, 224, 232)):
        A(f"v_pk_add_f32 v[{d}:{d+1}], v[{a_}:{a_+1}], v[{b_}:{b_+1}]")
    def mod2(x_, c_, s_, o_):
        A(f"v_pk_mul_f32 v[{x_}:{x_+1}], v[{x_}:{x_+1}], v[{c_}:{c_+1}]"); rndn([x_, x_ + 1])
        A(f"v_pk_add_f32 v[{x_}:{x_+1}], v[{x_}:{x_+1}], v[{s_}:{s_+1}]\nv_cvt_pk_bf16_f32 v{o_}, v{x_}, v{x_+1}")
    rndn([32, 33]); mod2(32, 84, 76, 77)
    A(f"ds_write_b32 v111, v77 offset:{LX2}")
    A(f"s_waitcnt lgkmcnt(0)\ns_cbranch_execz L_nb1\ns_barrier\nL_nb1:\nds_read_b128 v[32:35], v1 offset:{LX2}\nds_read_u16 v109, v116 offset:{LX2}")
    unpack(76, 77, 77)
    A("s_waitcnt lgkmcnt(1)")
    ln_stats(32, 36, 46, 47)
    A("v_sub_f32 v76, v76, v46\nv_sub_f32 v77, v77, v46"); rndn([76, 77])
    A("v_mul_f32 v76, v76, v47\nv_mul_f32 v77, v77, v47"); rndn([76, 77])
    mod2(76, 88, 86, 76)
    for k in range(4): A(f"v_mov_b32_dpp v{72+k}, v76 quad_perm:[{k},{k},{k},{k}] {DPP}")
    tile_dot(MW, 72, 8); tile_dot(MU, 72, 16)
    halve([list(range(8, 16)), list(range(16, 24))]); ror("v_add_f32", [8, 9, 16, 17], [8, 4])
    A(f"ds_write_b64 v67, v[8:9] offset:{LRED}\nds_write_b64 v67, v[16:17] offset:{LRED+512}")
    A("s_waitcnt lgkmcnt(0)\ns_cbranch_execz L_nb2\ns_barrier\nL_nb2:")
    for k in range(4): A(f"ds_read2st64_b32 v[{32+2*k}:{33+2*k}], v{113 if k % 2 == 0 else 122} offset0:{LRED//256 + k//2} offset1:{LRED//256 + k//2 + 2}")
    A("s_waitcnt lgkmcnt(0)\nv_pk_add_f32 v[32:33], v[32:33], v[34:35]\nv_pk_add_f32 v[36:37], v[36:37], v[38:39]\nv_pk_add_f32 v[32:33], v[32:33], v[36:37]")
    rndn([32, 33])
    A("v_mul_f32 v34, v32, v32\nv_mul_f32 v34, 0x3d372713, v34\nv_fma_f32 v34, v34, v32, v32\nv_mul_f32 v34, 0xc0135761, v34")
    A("v_exp_f32 v34, v34\nv_add_f32 v34, 1.0, v34\nv_rcp_f32 v34, v34\nv_mul_f32 v34, v34, v32"); rnd1(34)
    A(f"v_mul_f32 v34, v34, v33\nv_cvt_pk_bf16_f32 v34, v34, v34\nds_write_b16 v112, v34 offset:{LA}\nds_read_b128 v[72:75], v114 offset:{LA}")
    A("s_waitcnt lgkmcnt(0)")
    tile_dot(MD, 72, 8)
    halve([list(range(8, 16))])
    A("v_min_u32 v8, -2, v8\nv_min_u32 v9, -2, v9\nbuffer_store_dwordx2 v[8:9], v115, s[36:39], s48 offen sc1")
    ST(6)
    A(f"s_cmp_ge_u32 s68, 32\ns_cbranch_scc1 L_end\ns_add_u32 s48, s90, {DP}")
    poll(lambda: A("buffer_load_dwordx4 v[32:35], v31, s[36:39], s48 offen sc1"), lambda: chk_sent([32, 33, 34, 35], 24), zsl)
    ST(7)
    halve([[32, 33, 34, 35]]); ror("v_add_f32", [32], [8, 4, 2, 1]); rnd1(32)
    A("v_mul_f32 v32, v32, v108"); rnd1(32)
    A("v_lshlrev_b32 v109, 16, v109\nv_add_f32 v32, v32, v109\nv_cvt_pk_bf16_f32 v32, v32, v32")
    A("s_and_b64 exec, s[64:65], s[66:67]\nbuffer_store_short v32, v116, s[60:63], 0 offen")
    A("s_or_b32 s35, s68, s33\ns_cbranch_scc1 L_end\ns_and_b64 exec, 1, s[66:67]\nv_mov_b32 v24, s32\nbuffer_store_dword v24, off, s[36:39], 0 sc1")
    A("L_end:")
    if dry: A("s_cmp_lg_u32 s66, 0\ns_cbranch_scc1 L_fin\ns_mov_b64 s[66:67], -1\ns_mov_b64 exec, -1\ns_branch L_cl\nL_fin:")
    if stamp:
        ST(8)
        A("s_mov_b64 exec, 1\ns_add_u32 s30, s30, 0x8000000\ns_addc_u32 s31, s31, 0\ns_lshl_b32 s35, s2, 3\ns_add_u32 s35, s35, s3\ns_lshl_b32 s35, s35, 7\nv_mov_b32 v3, s35\ns_waitcnt lgkmcnt(0)")
        for i in range(9): A(f"v_mov_b32 v4, s{70+2*i}\nv_mov_b32 v5, s{71+2*i}\nglobal_store_dwordx2 v3, v[4:5], s[30:31] offset:{8*i}")
    A("L_exit:\ns_endpgm")
    post = f""".section .rodata,"a"
.p2align 6
.amdhsa_kernel {NAME}_kernel
  .amdhsa_next_free_vgpr 256
  .amdhsa_next_free_sgpr 102
  .amdhsa_accum_offset 256
  .amdhsa_group_segment_fixed_size 0
  .amdhsa_kernarg_size 112
  .amdhsa_user_sgpr_count 2
  .amdhsa_user_sgpr_kernarg_segment_ptr 1
  .amdhsa_system_sgpr_workgroup_id_x 1
  .amdhsa_float_denorm_mode_32 3
.end_amdhsa_kernel
"""
    t = A.text(); i = t.index("L_finish:")
    import re
    u = re.sub(r"(buffer_store.*) sc1", lambda m: m.group(1) + " " + hs, t[i:]); u = re.sub(r"(buffer_load.*) sc1", lambda m: m.group(1) + " " + hl, u)
    return pre + t[:i] + u + post
if __name__ == "__main__":
    out = sys.argv[1]
    kw = {}
    for a in sys.argv[2:]:
        k, v = a.split("=")
        kw[k] = int(v) if v.lstrip("-").isdigit() else v
    open(out, "w").write(gen(**kw))
```

```python
import sys
from asmlib import Asm
NAME = "adaLN_cond__mha_block_cached__geglu_ffn__decode"
DPP = "row_mask:0xf bank_mask:0xf"
MODG, QG, PART, YP, DP, WSZ = 0x1000, 0x4000, 0x10000, 0x50000, 0x54000, 0x70000
LCNT, LPROD, LFLAG, LCONS, LRED, LX2, LA, LML, LPO, LBK = 0, 16, 24, 32, 512, 1536, 2560, 3072, 4096, 8192
TK = 0x8000
def gen(N=21, NS=19, nst=480, G=4, LK=4, stamp=False, wflag="nt", x=0, ev0=24, evd=24, psl=1, qsl=1, npre=4, dry=0, wsl=0, fsl=0, zsl=0, tch=1, mp=1, pa=1, ldry=1, peel=2, tm=2, pm=0, rp=0, rsh=0, alt=0, ax=1, D=0, tp=0, sw=0, sg=0, dp=0, dsl=8, asl=2, hs='sc1', hl='sc1'):
    hs = hs.replace('_', ' '); hl = hl.replace('_', ' ')
    A = Asm()
    DP = YP + (0x10000 if rp else 0x4000); WSZ = DP + 56 * 2048
    lds = LBK + NS * 8192
    NR = NS - 2; nk = nst // 2; LSC = 4096
    assert nk % 4 == 0 and LSC + nk * 64 <= LBK + 16384 and ev0 >= 4 * npre and ev0 + 3 * evd + 12 * sw + 60 * sg + 3 < nst
    hdr = open("cdna_kernels/" + NAME + ".s.ref").read().split("; Override launch")[0]
    pre = hdr + f"; @launch grid=(256,1,1) block=(320,1,1) lds={lds}\n"
    pre += f'.amdgcn_target "amdgcn-amd-amdhsa--gfx950"\n.text\n.globl {NAME}_kernel\n.p2align 8\n.type {NAME}_kernel,@function\n{NAME}_kernel:\n'
    uid = [0]
    def lab(p):
        uid[0] += 1; return f"L_{p}{uid[0]}"
    def ST(i):
        if stamp: A(f"s_memrealtime s[{70+2*i}:{71+2*i}]")
    def srd(d, base, size, off=None):
        if off is None: A(f"s_mov_b32 s{d}, s{base}\ns_mov_b32 s{d+1}, s{base+1}")
        else: A(f"s_add_u32 s{d}, s{base}, {off}\ns_addc_u32 s{d+1}, s{base+1}, 0")
        A(f"s_mov_b32 s{d+2}, {size}\ns_mov_b32 s{d+3}, 0x20000")
    def unpack(lo, hi, src):
        if hi == src: A(f"v_lshlrev_b32 v{lo}, 16, v{src}\nv_and_b32 v{hi}, s52, v{src}")
        else: A(f"v_and_b32 v{hi}, s52, v{src}\nv_lshlrev_b32 v{lo}, 16, v{src}")
    def rndn(rs):
        for a, b in zip(rs[::2], rs[1::2]): A(f"v_cvt_pk_bf16_f32 v{b}, v{a}, v{b}")
        for a, b in zip(rs[::2], rs[1::2]): unpack(a, b, b)
    def rnd1(a): A(f"v_cvt_pk_bf16_f32 v{a}, v{a}, v{a}\nv_lshlrev_b32 v{a}, 16, v{a}")
    def ror(op, rs, steps):
        for st in steps:
            for r in rs: A(f"{op}_dpp v{r}, v{r}, v{r} row_ror:{st} {DPP}")
    def quad(op, rs):
        for qp in ("[1,0,3,2]", "[2,3,0,1]"):
            for r in rs: A(f"{op}_dpp v{r}, v{r}, v{r} quad_perm:{qp} {DPP}")
    def xrows(op, pairs):
        for sw in ("v_permlane32_swap_b32", "v_permlane16_swap_b32"):
            for r, t in pairs: A(f"v_mov_b32 v{t}, v{r}")
            for r, t in pairs: A(f"{sw} v{r}, v{t}")
            for r, t in pairs: A(f"{op} v{r}, v{r}, v{t}")
    def halve(groups):
        for sw in ("v_permlane32_swap_b32", "v_permlane16_swap_b32"):
            for g in groups:
                for i in range(len(g) // 2): A(f"{sw} v{g[i]}, v{g[i+len(g)//2]}")
            for g in groups:
                for i in range(len(g) // 2): A(f"v_add_f32 v{g[i]}, v{g[i]}, v{g[i+len(g)//2]}")
            groups = [g[:len(g) // 2] for g in groups]
    def poll(loads, check, sleep=1):
        l = lab("poll"); d = lab("pdone")
        A(f"{l}:"); loads(); A("s_waitcnt vmcnt(0)"); check()
        A(f"s_cbranch_vccz {d}\n{'s_mov_b64 exec, vcc' if mp else ''}\ns_sub_u32 s59, s59, 1\ns_cbranch_scc1 L_end\n{'s_sleep %d' % sleep if sleep else ''}\ns_branch {l}\n{d}:")
        if mp: A("s_mov_b64 exec, s[66:67]")
    def poll2(loads, n, check, sleep, depth):
        if not depth: return poll(loads, check, sleep)
        l = lab("poll"); d = lab("pdone")
        for k in range(depth): loads(); A(f"s_sleep {dsl}")
        A(f"{l}:"); loads(); A(f"s_waitcnt vmcnt({n*depth})"); check()
        A(f"s_cbranch_vccz {d}\ns_mov_b64 exec, vcc\ns_sub_u32 s59, s59, 1\ns_cbranch_scc0 {l}\ns_branch L_end\n{d}:\ns_mov_b64 exec, s[66:67]")
    def chk_tags(rs, t):
        A(f"v_xor_b32 v{t}, s32, v{rs[0]}")
        for r in rs[1:]: A(f"v_xor_b32 v{r}, s32, v{r}")
        rr = rs[1:]
        while len(rr) >= 2: A(f"v_or3_b32 v{t}, v{t}, v{rr[0]}, v{rr[1]}"); rr = rr[2:]
        if rr: A(f"v_or_b32 v{t}, v{t}, v{rr[0]}")
        A(f"v_cmp_ne_u32 vcc, 0, v{t}")
    def chk_sent(rs, t):
        A(f"v_max_u32 v{t}, v{rs[0]}, v{rs[1]}"); rr = rs[2:]
        while len(rr) >= 2: A(f"v_max3_u32 v{t}, v{t}, v{rr[0]}, v{rr[1]}"); rr = rr[2:]
        A(f"v_cmp_eq_u32 vcc, -1, v{t}")
    def tile_load(wb, voff, stride):
        if x & 2 and stride < 6000: return
        for i in range(8):
            if i: A(f"s_mov_b32 s48, {i*stride}")
            A(f"buffer_load_dwordx4 v[{wb+4*i}:{wb+4*i+3}], v{voff}, s[40:43], {'s48' if i else '0'} offen {wflag}")
    def tile_tr(wb, spare):
        M = []
        for p in range(4):
            row = []
            for j in range(4):
                a, b = wb + 8 * p + j, wb + 8 * p + 4 + j
                A(f"v_perm_b32 v{spare}, v{b}, v{a}, s53\nv_perm_b32 v{b}, v{b}, v{a}, s54")
                row += [spare, b]; spare = a
            M.append(row)
        return M
    def tile_dot(M, act, acc):
        for p in range(4):
            for c in range(8): A(f"v_dot2_f32_bf16 v{acc+c}, v{M[p][c]}, v{act+p}, {'v%d' % (acc+c) if p else '0'}")
    def arrive(cnt, n, skip, reads, nr):
        A(f"s_and_b64 exec, 1, s[66:67]\nds_add_rtn_u32 v22, v3, v23 offset:{LCNT+4*cnt}\ns_mov_b64 exec, s[66:67]")
        reads()
        A(f"s_waitcnt lgkmcnt({nr})\nv_readfirstlane_b32 s35, v22")
        A(f"s_xor_b32 s35, s35, {n-1}\ns_and_b32 s35, s35, s66\ns_cbranch_scc1 {skip}")
    def gemv_tail(acc, cnt, skip):
        A("v_and_b32 v24, 15, v0\nv_lshlrev_b32 v24, 3, v24\nv_mov_b32 v23, 1")
        halve([list(range(acc, acc + 8))]); ror("v_add_f32", [acc, acc + 1], [8, 4])
        A(f"ds_write_b64 v67, v[{acc}:{acc+1}] offset:{LRED}")
        arrive(cnt, 4, skip, lambda: [A(f"ds_read_b64 v[{26+2*k}:{27+2*k}], v24 offset:{LRED+128*k}") for k in range(4)], 4)
        A("s_waitcnt lgkmcnt(0)\nv_pk_add_f32 v[26:27], v[26:27], v[28:29]\nv_pk_add_f32 v[30:31], v[30:31], v[32:33]\nv_pk_add_f32 v[26:27], v[26:27], v[30:31]")
    def ln_stats(src, t, mo, ro):
        for j in range(4): unpack(t + 2 * j, t + 2 * j + 1, src + j)
        A(f"v_pk_add_f32 v[{mo}:{ro}], v[{t}:{t+1}], v[{t+2}:{t+3}]\nv_pk_add_f32 v[{t+8}:{t+9}], v[{t+4}:{t+5}], v[{t+6}:{t+7}]")
        A(f"v_pk_add_f32 v[{mo}:{ro}], v[{mo}:{ro}], v[{t+8}:{t+9}]\nv_add_f32 v{mo}, v{mo}, v{ro}")
        ror("v_add_f32", [mo], [8, 4, 2, 1]); xrows("v_add_f32", [(mo, t + 8)])
        A(f"v_mul_f32 v{mo}, 0x3b000000, v{mo}")
        for j in range(0, 8, 2): A(f"v_pk_add_f32 v[{t+j}:{t+j+1}], v[{t+j}:{t+j+1}], v[{mo}:{ro}] op_sel_hi:[1,0] neg_lo:[0,1] neg_hi:[0,1]")
        A(f"v_pk_mul_f32 v[{t}:{t+1}], v[{t}:{t+1}], v[{t}:{t+1}]")
        for j in range(2, 8, 2): A(f"v_pk_fma_f32 v[{t}:{t+1}], v[{t+j}:{t+j+1}], v[{t+j}:{t+j+1}], v[{t}:{t+1}]")
        A(f"v_add_f32 v{ro}, v{t}, v{t+1}")
        ror("v_add_f32", [ro], [8, 4, 2, 1]); xrows("v_add_f32", [(ro, t + 8)])
        A(f"v_mul_f32 v{ro}, 0x3b000000, v{ro}")
        rndn([mo, ro])
        A(f"v_add_f32 v{ro}, 0x3727c5ac, v{ro}"); rnd1(ro)
        A(f"v_sqrt_f32 v{ro}, v{ro}"); rnd1(ro)
        A(f"v_rcp_f32 v{ro}, v{ro}")
    def ln_norm(x, mo, ro):
        X = list(range(x, x + 8))
        for r in X: A(f"v_sub_f32 v{r}, v{r}, v{mo}")
        rndn(X)
        for r in X: A(f"v_mul_f32 v{r}, v{r}, v{ro}")
        rndn(X)
    def modulate(x, c1, s, out):
        for j in range(8): A(f"v_mul_f32 v{x+j}, v{x+j}, v{c1+j}")
        rndn(list(range(x, x + 8)))
        for j in range(8): A(f"v_add_f32 v{x+j}, v{x+j}, v{s+j}")
        for j in range(4): A(f"v_cvt_pk_bf16_f32 v{out+j}, v{x+2*j}, v{x+2*j+1}")
    def get_mod(sec, dst):
        A(f"s_mov_b32 s48, {MODG + sec*2048}")
        A(f"buffer_load_dwordx4 v[{dst}:{dst+3}], v68, s[36:39], s48 offen sc1\nbuffer_load_dwordx4 v[{dst+4}:{dst+7}], v68, s[36:39], s48 offen offset:16 sc1")
    def granule_unpack(d, plus1=False):
        for j in range(4): unpack(d + 2 * j, d + 2 * j + 1, d + 2 * j)
        if plus1:
            for j in range(8): A(f"v_add_f32 v{d+j}, 1.0, v{d+j}")
            rndn(list(range(d, d + 8)))
    def qk(kb, n, xb=20):
        for t in range(4):
            for i in range(n): A(f"v_dot2_f32_bf16 v{xb+i}, v{kb+4*i+t}, v{4+t}, {'v%d' % (xb+i) if t else '0'}")
    def soft(n):
        X = list(range(20, 20 + n))
        ror("v_add_f32", X, [8, 4, 2, 1])
        rndn(X)
        for r in X: A(f"v_mul_f32 v{r}, s58, v{r}")
        rndn(X)
        if n == 4: A("v_max3_f32 v24, v20, v21, v22\nv_max3_f32 v24, v24, v23, v17")
        else: A("v_max3_f32 v24, v20, v21, v17")
        sk = lab("nors")
        A(f"v_cmp_gt_f32 vcc, v24, v17\ns_cbranch_vccz {sk}")
        A("v_mov_b32 v17, v24\nv_mul_f32 v25, s55, v24\nv_sub_f32 v24, v25, v18\nv_exp_f32 v24, v24\nv_mov_b32 v18, v25")
        for j in range(4): A(f"v_pk_mul_f32 v[{8+2*j}:{9+2*j}], v[{8+2*j}:{9+2*j}], v[24:25] op_sel_hi:[1,0]")
        A(f"v_mul_f32 v16, v16, v24\n{sk}:")
        for r in X: A(f"v_fma_f32 v{r}, v{r}, s51, v18")
        for r in X: A(f"v_exp_f32 v{r}, v{r}")
        for r in X: A(f"v_add_f32 v16, v16, v{r}")
    def pv(vb, n, pb=20):
        for i in range(n):
            for j in range(4): unpack(24 + 2 * j, 25 + 2 * j, vb + 4 * i + j)
            e = pb + (i & ~1)
            sel = "op_sel:[0,1,0] op_sel_hi:[1,1,1]" if i & 1 else "op_sel_hi:[1,0,1]"
            for j in range(4): A(f"v_pk_fma_f32 v[{8+2*j}:{9+2*j}], v[{24+2*j}:{25+2*j}], v[{e}:{e+1}], v[{8+2*j}:{9+2*j}] {sel}")
    def kscore():
        X = list(range(8, 16))
        ror("v_add_f32", X, [8, 4, 2, 1]); rndn(X)
        for r in X: A(f"v_mul_f32 v{r}, s58, v{r}")
        for j in range(4): A(f"v_cvt_pk_bf16_f32 v{20+j}, v{8+2*j}, v{9+2*j}")
        for j in range(4): A(f"v_max3_f32 v17, v{8+2*j}, v{9+2*j}, v17")
        A(f"s_mov_b64 exec, s[64:65]\nds_write_b128 v118, v[20:23] offset:{LSC}\ns_mov_b64 exec, -1\nv_add_u32 v118, 0x100, v118")
    def att_init():
        for r in range(8, 17): A(f"v_mov_b32 v{r}, 0")
        A("v_mov_b32 v17, 0xf149f2ca\nv_mul_f32 v18, s55, v17")

    def roles():
        A("s_sub_u32 s33, s3, 1\ns_lshr_b32 s48, s91, 1\ns_add_u32 s69, s35, s48\ns_and_b32 s69, s69, 7")
        A("s_lshl_b32 s48, s48, 2\ns_add_u32 s48, s48, s69\ns_lshl_b32 s48, s48, 1\ns_and_b32 s35, s91, 1\ns_or_b32 s34, s48, s35")
        A("s_sub_u32 s48, s69, 4\ns_lshl_b32 s48, s48, 5\ns_add_u32 s48, s48, s91\ns_cmp_ge_u32 s69, 4\ns_cselect_b32 s34, s48, s34")
        if tm & 1: A("s_and_b32 s34, s69, 3\ns_lshl_b32 s34, s34, 5\ns_add_u32 s34, s34, s91")
        A("s_sub_u32 s68, 7, s69\ns_lshl_b32 s68, s68, 5\ns_add_u32 s68, s68, s91")
        A("s_mov_b32 s53, 0x05040100\ns_mov_b32 s54, 0x07060302\ns_mov_b32 s51, 0x3fb8aa3b\ns_mov_b32 s55, 0xbfb8aa3b\ns_mov_b32 s52, 0xffff0000\ns_mov_b32 s58, 0x3db504f3")
    A("s_cmp_ge_u32 s2, 256\ns_cbranch_scc1 L_exit")
    A("s_load_dwordx16 s[4:19], s[0:1], 0\ns_load_dwordx8 s[20:27], s[0:1], 64\ns_load_dwordx4 s[28:31], s[0:1], 96")
    ST(0)
    if stamp:
        for i in range(1, 9): A(f"s_mov_b64 s[{70+2*i}:{71+2*i}], 0")
    A(f"v_lshrrev_b32 v1, 6, v0\nv_and_b32 v0, 63, v0\nv_mov_b32 v4, 0\nv_readfirstlane_b32 s3, v1")
    A(f"v_mov_b32 v5, 0\nv_mov_b32 v6, 0\nv_mov_b32 v7, 0\nv_mov_b32 v3, 0\nds_write_b128 v3, v[4:7] offset:{LCNT}\nds_write_b128 v3, v[4:7] offset:{LCONS}")
    A(f"v_bfrev_b32 v5, -2\nds_write_b128 v3, v[4:7] offset:{LPROD}")
    A("s_mov_b64 s[66:67], -1\ns_mov_b32 s59, 0x40000\nv_lshlrev_b32 v1, 4, v0\ns_lshr_b32 s91, s2, 3\ns_and_b32 s35, s2, 7")
    A("s_cmp_lg_u32 s3, 0\ns_waitcnt lgkmcnt(0)\ns_cbranch_scc1 L_cons")
    js = (N - 2) % 8
    A("s_setprio 3\ns_lshl_b32 s48, s35, 21\ns_lshl_b32 s35, s91, 24")
    A("s_mov_b32 s94, s35\ns_add_u32 s95, s94, 4096\ns_mov_b32 s96, s48")
    srd(40, 6, 1 << 24, "s94"); srd(44, 6, (1 << 24) - 4096, "s95")
    A(f"s_mov_b32 s89, {nk}\ns_movk_i32 s88, 8192")
    for q in range(2 * peel):
        A(f"s_mov_b32 m0, {LBK + 4096 * q}")
        for j in range(4): A(f"buffer_load_dwordx4 v1, s[40:43], s48 offen offset:{j*1024} nt lds")
        A("s_add_u32 s48, s48, 4096")
    A(f"s_mov_b32 s49, {nst - peel}\ns_mov_b32 s50, {LBK + 8192 * peel}\ns_mov_b32 s56, {peel}\ns_mov_b32 s57, {NS}\nv_mov_b32 v2, {(js + 2 - N)//8 - 1 + peel}")
    A(f"s_lshl_b32 s35, s91, 8\ns_add_u32 s35, s35, {TK}"); srd(36, 30, 256, "s35")
    if stamp: A("s_mov_b32 s93, 16")
    A("s_barrier")
    A(f"L_ll:\ns_cmp_ge_u32 s56, s57\ns_cbranch_scc1 L_lstall\ns_mov_b32 m0, s50")
    ngr = 8 * (512 - nst) // G
    over = {0: f"ds_read_b128 v[4:7], v3 offset:{LCONS}\ns_add_u32 s56, s56, 1",
            1: (f"s_cmp_eq_u32 s49, {LK}\ns_cbranch_scc1 L_tk\nL_tkr:" if ngr else ""),
            2: ("s_cmp_eq_u32 s56, s93\ns_cbranch_scc1 L_st\nL_str:" if stamp else ""),
            3: "s_add_u32 m0, s50, 4096\ns_add_u32 s50, s50, 8192",
            4: f"s_cmp_eq_u32 s50, {lds}\ns_cselect_b32 s50, {LBK+16384}, s50",
            5: "s_waitcnt lgkmcnt(0)\nv_min3_u32 v4, v4, v5, v6\nv_min_u32 v4, v4, v7",
            6: f"v_readfirstlane_b32 s57, v4\ns_add_u32 s57, s57, {NR}\ns_max_u32 s57, s57, {NS}",
            7: "s_add_u32 s48, s48, s88\ns_sub_u32 s49, s49, 1\ns_cmp_lg_u32 s49, s89"}
    for j in range(8):
        A(f"buffer_load_dwordx4 v1, s[{40+4*(j//4)}:{43+4*(j//4)}], s48 offen offset:{(j%4)*1024} nt lds")
        if j == js: A("v_add_u32 v2, 1, v2")
        A(over.get(j, ""))
        A(f"s_waitcnt vmcnt({N-1})")
        if j == js: A(f"ds_write_b32 v3, v2 offset:{LPROD}")
    A("s_cbranch_scc1 L_ll\ns_cmp_eq_u32 s89, 0\ns_cbranch_scc1 L_tick")
    srd(40, 8, 1 << 24, "s94"); srd(44, 8, (1 << 24) - 4096, "s95")
    A("s_mov_b32 s89, 0\ns_mov_b32 s48, s96\ns_branch L_ll\nL_tick:")
    if ngr: srd(40, 6, 1 << 24, "s94"); srd(44, 8, 1 << 24, "s94"); A("s_movk_i32 s88, 4096")
    if ngr:
        assert LK * 8 - 2 >= N - 1 and LK <= G
        A(f"v_readfirstlane_b32 s48, v8\ns_cmp_ge_u32 s48, {ngr}\ns_cbranch_scc1 L_ldone\ns_mov_b32 s97, s48")
        A(f"s_and_b32 s35, s48, 7\ns_lshr_b32 s48, s48, 3\ns_mul_i32 s48, s48, {G*4096}\ns_lshl_b32 s35, s35, 21\ns_add_u32 s48, s48, {nst*4096}\ns_add_u32 s48, s48, s35\ns_mov_b32 s49, {G}")
        if D:
            assert LK == G and 16 * G + 1 < 64 and (N - 1) // 8 == G - 1
            A(f"s_cmp_lt_u32 s97, {ngr - D}\ns_cbranch_scc1 L_ll\ns_add_u32 s35, s56, {G}\ns_cmp_gt_u32 s35, s57\ns_cbranch_scc1 L_ll")
            A(f"v_mov_b32 v8, 1\ns_mov_b64 exec, 1\nbuffer_atomic_add v8, off, s[36:39], 0 sc0 sc1\ns_mov_b64 exec, -1\ns_mov_b32 s56, s35\nv_add_u32 v2, {G}, v2")
            for it in range(G):
                for kv in range(2):
                    A(f"s_add_u32 m0, s50, {4096*kv}")
                    for j in range(4): A(f"buffer_load_dwordx4 v1, s[{40+4*kv}:{43+4*kv}], s48 offen offset:{j*1024} nt lds")
                A(f"s_add_u32 s50, s50, 8192\ns_add_u32 s48, s48, 4096\ns_cmp_eq_u32 s50, {lds}\ns_cselect_b32 s50, {LBK+16384}, s50")
            A("v_mov_b32 v9, s56")
            for k in range(2 * G - 1, G - 1, -1): A(f"v_subrev_u32 v10, {k}, v9\ns_waitcnt vmcnt({8*k})\nds_write_b32 v3, v10 offset:{LPROD}")
            A(f"ds_read_b128 v[4:7], v3 offset:{LCONS}\ns_waitcnt lgkmcnt(0)\nv_min3_u32 v4, v4, v5, v6\nv_min_u32 v4, v4, v7\nv_readfirstlane_b32 s57, v4\ns_add_u32 s57, s57, {NR}\ns_branch L_tick")
        else: A("s_branch L_ll")
        A("L_tk:\nv_mov_b32 v8, 1\ns_mov_b64 exec, 1\nbuffer_atomic_add v8, off, s[36:39], 0 sc0 sc1\ns_mov_b64 exec, -1\ns_branch L_tkr")
    A("L_ldone:")
    ST(1)
    A("v_mov_b32 v5, s56")
    for k in range((N - 1) // 8, -1, -1):
        A(f"v_subrev_u32 v4, {k}, v5\ns_waitcnt vmcnt({8*k})\nds_write_b64 v3, v[4:5] offset:{LPROD}")
    A("s_waitcnt lgkmcnt(0)")
    ST(3)
    if ldry:
        A("s_setprio 0\ns_and_b32 s35, s2, 7\ns_mov_b32 s3, 1"); roles(); srd(60, 26, 1024)
        for r in (24, 25, 26, 28, 30, 31, 66, 67, 68, 69, 110, 111, 112, 113, 114, 115, 116, 120, 122): A(f"v_mov_b32 v{r}, 0")
        A("s_mov_b32 s49, 0\ns_mov_b32 s3, 0\ns_mov_b32 s90, 0\ns_mov_b32 s32, 0\ns_mov_b64 s[64:65], 0\ns_mov_b64 s[66:67], 0\ns_mov_b64 exec, 0\ns_branch L_notlast")
    else: A("s_branch L_end")
    if stamp:
        A("L_st:")
        pts = [16, 64, ev0 - 8, nst - 1]
        for i, p in enumerate(pts):
            A(f"s_cmp_lg_u32 s56, {p}\ns_cbranch_scc1 L_st{i}"); ST(4 + i); A(f"s_mov_b32 s93, {pts[i+1] if i < 3 else -1}\nL_st{i}:")
        A("s_branch L_str")
    A(f"L_lstall:")
    if stamp: A("s_cmp_lg_u32 s74, 0\ns_cbranch_scc1 L_ls2"); ST(2); A("L_ls2:")
    A(f"ds_read_b128 v[4:7], v3 offset:{LCONS}\ns_sub_u32 s59, s59, 1\ns_cbranch_scc1 L_end\ns_waitcnt lgkmcnt(0)")
    A(f"v_min3_u32 v4, v4, v5, v6\nv_min_u32 v4, v4, v7\nv_readfirstlane_b32 s57, v4\ns_add_u32 s57, s57, {NR}\ns_max_u32 s57, s57, {NS}\ns_branch L_ll")
    A("L_cons:")
    srd(36, 30, WSZ)
    A("buffer_load_dword v64, off, s[36:39], 0 sc1")
    roles()
    if ldry: A('s_setprio 1')
    A("v_lshrrev_b32 v65, 2, v0\nv_lshlrev_b32 v65, 3, v65\ns_lshl_b32 s35, s33, 7\nv_add_u32 v65, s35, v65")
    A("v_and_b32 v66, 3, v0\nv_lshlrev_b32 v66, 4, v66\nv_lshrrev_b32 v67, 4, v0\nv_lshlrev_b32 v67, 3, v67\nv_lshl_add_u32 v67, v66, 1, v67\nv_add_u32 v67, s35, v67")
    A("v_lshlrev_b32 v68, 2, v65\nv_lshlrev_b32 v69, 1, v65\ns_lshl_b32 s49, s34, 6")
    if x & 8: A("s_cmp_lg_u32 s69, 4\ns_cbranch_scc1 L_idle")
    A("s_cmp_lt_u32 s69, 4\ns_cbranch_scc1 L_qstage\ns_cmp_eq_u32 s69, 7\ns_cbranch_scc1 L_idle")
    A("s_cmp_lg_u32 s69, 4\ns_cbranch_scc1 L_noclr")
    for r in range(24, 28): A(f"v_mov_b32 v{r}, -1")
    A(f"s_lshl_b32 s35, s91, 2\ns_add_u32 s35, s35, s33\ns_mul_i32 s50, s35, {(WSZ - YP) // 128}\ns_add_u32 s50, s50, {YP}\nbuffer_store_dwordx4 v[24:27], v1, s[36:39], s50 offen sc1")
    A(f"s_lshl_b32 s48, s35, 11\ns_add_u32 s48, s48, {PART}\ns_mov_b32 exec_hi, 15")
    A(f"buffer_store_dwordx4 v[24:27], v1, s[36:39], s48 offen sc1\nbuffer_store_dwordx4 v[24:27], v1, s[36:39], s48 offen offset:1024 sc1")
    if rp: A("s_mov_b64 exec, 0xffffff\nbuffer_store_dwordx4 v[24:27], v1, s[36:39], s50 offen offset:1024 sc1")
    A(f"s_lshl_b32 s48, s35, 6\ns_add_u32 s48, s48, {TK}\ns_mov_b64 exec, 1\nbuffer_store_dword v3, off, s[36:39], s48 sc1\ns_mov_b64 exec, -1")
    A("L_noclr:")
    A("global_load_dwordx4 v[72:75], v69, s[22:23]")
    srd(40, 24, 512 * 6144)
    A("s_movk_i32 s35, 6144\nv_mul_lo_u32 v70, s35, v65\nv_add3_u32 v70, v70, v66, s49")
    tile_load(128, 70, 6144)
    A("s_barrier\ns_waitcnt vmcnt(8)")
    for j in range(4): unpack(76 + 2 * j, 77 + 2 * j, 72 + j)
    A("s_mov_b32 s35, 0xb2a57060")
    for j in range(8): A(f"v_mul_f32 v{84+j}, s55, v{76+j}")
    for j in range(8): A(f"v_fma_f32 v{92+j}, v{76+j}, s55, -v{84+j}")
    for j in range(8): A(f"v_exp_f32 v{84+j}, v{84+j}")
    for j in range(8): A(f"v_fmac_f32 v{92+j}, s35, v{76+j}")
    for j in range(8): A(f"v_min_f32 v{84+j}, 0x7e000000, v{84+j}")
    for j in range(8): A(f"v_mul_f32 v{92+j}, 0x3f317218, v{92+j}")
    for j in range(8): A(f"v_fmac_f32 v{84+j}, v{92+j}, v{84+j}")
    for j in range(8): A(f"v_add_f32 v{84+j}, 1.0, v{84+j}")
    for j in range(8): A(f"v_rcp_f32 v{92+j}, v{84+j}")
    for j in range(8): A(f"v_mul_f32 v{100+j}, v{76+j}, v{92+j}")
    for j in range(8): A(f"v_fma_f32 v{84+j}, -v{100+j}, v{84+j}, v{76+j}")
    for j in range(8): A(f"v_fma_f32 v{84+j}, v{84+j}, v{92+j}, v{100+j}")
    for j in range(4): A(f"v_cvt_pk_bf16_f32 v{72+j}, v{84+2*j}, v{85+2*j}")
    A(f"v_readfirstlane_b32 s32, v64\ns_add_u32 s32, s32, 0x9e3779b9\ns_mov_b32 s50, {MODG}\ns_waitcnt vmcnt(0)")
    M = tile_tr(128, 127)
    A("s_branch L_pgemv")
    A("L_qstage:")
    A("global_load_dwordx4 v[72:75], v69, s[4:5]\nglobal_load_dwordx4 v[92:95], v1, s[4:5]")
    srd(40, 10, 512 * 8192)
    A("v_lshlrev_b32 v70, 13, v65\nv_add3_u32 v70, v70, v66, s49")
    tile_load(128, 70, 8192)
    A("s_barrier\ns_waitcnt vmcnt(8)")
    ln_stats(92, 96, 106, 107)
    for j in range(4): unpack(76 + 2 * j, 77 + 2 * j, 72 + j)
    ln_norm(76, 106, 107)
    A(f"v_readfirstlane_b32 s32, v64\ns_add_u32 s32, s32, 0x9e3779b9\ns_mov_b32 s50, {QG}\ns_waitcnt vmcnt(0)")
    tile_tr(128, 127)
    poll(lambda: (get_mod(0, 84), get_mod(1, 92)), lambda: chk_tags([85, 87, 89, 91, 93, 95, 97, 99], 100))
    ST(1)
    granule_unpack(84); granule_unpack(92, True)
    modulate(76, 92, 84, 72)
    A("L_pgemv:")
    tile_dot(M, 72, 8)
    gemv_tail(8, 0, "L_getq")
    A("v_cvt_pk_bf16_f32 v26, v26, v27\nv_mov_b32 v27, s32\ns_lshl_b32 s35, s34, 7\ns_add_u32 s50, s50, s35")
    A("s_mov_b64 exec, 0xffff\nbuffer_store_dwordx2 v[26:27], v24, s[36:39], s50 offen sc1\ns_mov_b64 exec, -1\ns_branch L_getq")
    A("L_idle:\ns_barrier\ns_waitcnt vmcnt(0)\nv_readfirstlane_b32 s32, v64\ns_add_u32 s32, s32, 0x9e3779b9")
    A("L_getq:\ns_waitcnt lgkmcnt(0)")
    ST(2)
    srd(60, 26, 1024); srd(40, 12, 0); A("v_mov_b32 v116, 0\nv_mov_b32 v70, 0\ns_mov_b32 s90, 0")
    att_init()
    if tm & 2: A("s_bfe_u32 s34, s91, 0x30001\ns_lshl_b32 s34, s34, 1\ns_lshr_b32 s35, s91, 4\ns_add_u32 s34, s34, s35\ns_lshl_b32 s34, s34, 2\ns_and_b32 s35, s69, 3\ns_add_u32 s34, s34, s35")
    if tm & 2: A("s_lshl_b32 s34, s34, 1\ns_and_b32 s35, s91, 1\ns_add_u32 s34, s34, s35\ns_lshl_b32 s49, s34, 6")
    A(f"s_lshl_b32 s48, s91, 9\ns_add_u32 s48, s48, {QG}\nv_and_b32 v24, 15, v0\nv_lshlrev_b32 v24, 5, v24")
    A(f"s_mov_b32 s56, s33\ns_mul_i32 s57, s33, {1 + 4 * sw}\ns_lshr_b32 s35, s91, 1\ns_mul_i32 s35, s35, {4 * sg}\ns_add_u32 s57, s57, s35\ns_add_u32 s57, s57, {ev0}\ns_lshl_b32 s50, s33, 13\ns_add_u32 s50, s50, {LBK}\ns_mov_b32 s92, 0\ns_lshl_b32 s35, s33, 2\nv_mov_b32 v19, s35")
    def adv(): A(f"v_add_u32 v2, s50, v1\ns_add_u32 s50, s50, 32768\ns_cmp_ge_u32 s50, {lds}\ns_cselect_b32 s35, {NR*8192}, 0\ns_sub_u32 s50, s50, s35")
    def rd(b=32):
        for i in range(8 if not x & 4 else 0): A(f"ds_read_b128 v[{b+4*i}:{b+3+4*i}], v2 offset:{i*1024}")
        A("s_add_u32 s56, s56, 4\nv_mov_b32 v26, s56")
    A("v_and_b32 v118, 48, v0\nv_lshl_add_u32 v118, v19, 4, v118\ns_mov_b32 s64, 0x10001\ns_mov_b32 s65, 0x10001")
    A("v_lshrrev_b32 v119, 2, v0\nv_lshlrev_b32 v119, 4, v119\nv_and_b32 v120, 1, v0\nv_lshl_add_u32 v119, v120, 3, v119\nv_and_b32 v120, 63, v119\nv_and_b32 v121, 2, v0")
    A("v_lshl_add_u32 v119, v121, 7, v119\nv_lshl_add_u32 v120, v121, 9, v120")
    if not pm & 1: A("v_lshlrev_b32 v119, 3, v0")
    if not pm & 2: A("v_and_b32 v120, 15, v0\nv_lshlrev_b32 v120, 3, v120")
    if rp: A("v_lshrrev_b32 v121, 4, v0\nv_lshl_add_u32 v120, v121, 14, v120")
    A("v_lshlrev_b32 v110, 3, v0\nv_lshl_add_u32 v110, v19, 7, v110\nv_lshrrev_b32 v111, 1, v110")
    A("v_and_b32 v112, 31, v0\nv_lshlrev_b32 v113, 2, v112\nv_add_u32 v122, 0x80, v113\nv_lshlrev_b32 v114, 4, v19\nv_lshl_add_u32 v112, v112, 1, v114")
    A("v_lshrrev_b32 v121, 4, v0\nv_lshl_add_u32 v114, v121, 4, v114\nv_and_b32 v115, 15, v0\nv_lshlrev_b32 v115, 5, v115\nv_lshl_add_u32 v115, v121, 3, v115")
    PB = [32, 224, 128, 160, 192][:npre]
    for b in PB:
        adv()
        A(f"L_pw{b}:\nds_read_b32 v25, v3 offset:{LPROD}\ns_sub_u32 s59, s59, 1\ns_cbranch_scc1 L_end\ns_waitcnt lgkmcnt(0)\nv_cmp_lt_i32 vcc, s56, v25\ns_cbranch_vccz L_pw{b}")
        rd(b)
        A(f"s_waitcnt lgkmcnt(0)\nds_write_b32 v19, v26 offset:{LCONS}")
    if not x & 8: poll(lambda: A("buffer_load_dwordx4 v[72:75], v24, s[36:39], s48 offen sc1\nbuffer_load_dwordx4 v[76:79], v24, s[36:39], s48 offen offset:16 sc1"), lambda: chk_tags([73, 75, 77, 79], 25), qsl)
    for j in range(4): A(f"v_mov_b32 v{4+j}, v{72+2*j}")
    ST(3)
    def touch(lbl):
        A(f"s_cmp_lg_u32 s33, 0\ns_cbranch_scc1 {lbl}\ns_lshl_b32 s35, s91, 24\nv_lshlrev_b32 v123, 21, v0\nv_add_u32 v123, {(2 << 20) - 64}, v123\ns_mov_b64 exec, 0xff")
        for base in (8, 6): srd(44, base, 1 << 24, "s35"); A(f"buffer_load_dword v124, v123, s[44:47], 0 offen nt")
        A(f"s_mov_b64 exec, -1\n{lbl}:")
    for b in PB:
        if not x & 1: qk(b, 8, 8); kscore()
    if tp & 1: touch("L_t1")
    A("L_cl:\ns_cmp_eq_u32 s56, s57\ns_cbranch_scc1 L_event")
    adv()
    A(f"L_cw:\nds_read_b64 v[24:25], v3 offset:{LPROD}\ns_waitcnt lgkmcnt(0)\nv_cmp_lt_i32 vcc, s56, v24\ns_cbranch_vccnz L_go")
    A(f"v_cmp_ge_i32 vcc, s56, v25\ns_cbranch_vccnz L_finish\ns_sub_u32 s59, s59, 1\ns_cbranch_scc1 L_end\ns_sleep {psl}\ns_branch L_cw")
    A(f"L_go:\ns_cmp_ge_u32 s56, {nk}\ns_cbranch_scc1 L_nok")
    rd()
    A("s_waitcnt lgkmcnt(4)")
    if not x & 1: qk(32, 4, 8)
    A(f"s_waitcnt lgkmcnt(0)\nds_write_b32 v19, v26 offset:{LCONS}")
    if not x & 1: qk(48, 4, 12); kscore()
    A(f"s_cmp_lt_u32 s56, {nk}\ns_cbranch_scc1 L_cl")
    rnd1(17)
    for r in range(8, 16): A(f"v_mov_b32 v{r}, 0")
    A(f"v_mul_f32 v18, s55, v17\nv_subrev_u32 v118, {nk*64}, v118\ns_branch L_cl")
    A(f"L_nok:\ns_cmp_ge_u32 s56, {nst}\ns_cbranch_scc1 L_mix\nds_read_b128 v[20:23], v118 offset:{LSC}")
    rd()
    A("v_add_u32 v118, 0x100, v118\ns_waitcnt lgkmcnt(8)")
    if not x & 1:
        for j in range(4): unpack(224 + 2 * j, 225 + 2 * j, 20 + j)
        for r in range(224, 232): A(f"v_fma_f32 v{r}, v{r}, s51, v18")
        for r in range(224, 232): A(f"v_exp_f32 v{r}, v{r}")
    A(f"s_waitcnt lgkmcnt(0)\nds_write_b32 v19, v26 offset:{LCONS}")
    if not x & 1:
        for r in range(224, 232): A(f"v_add_f32 v16, v16, v{r}")
        pv(32, 8, 224)
    A("s_branch L_cl\nL_mix:")
    rd()
    A("s_waitcnt lgkmcnt(4)")
    if not x & 1: qk(32, 4)
    A(f"s_waitcnt lgkmcnt(0)\nds_write_b32 v19, v26 offset:{LCONS}")
    if not x & 1: soft(4); pv(48, 4)
    A("s_branch L_cl")
    A(f"L_event:\ns_add_u32 s57, s57, {evd}\ns_add_u32 s92, s92, 1")
    for e in (2, 3, 4): A(f"s_cmp_eq_u32 s92, {e}\ns_cbranch_scc1 L_ev{e}")
    A("s_cmp_lt_u32 s69, 4\ns_cbranch_scc1 L_ldwo\ns_cmp_ge_u32 s68, 56\ns_cbranch_scc1 L_cl")
    A("s_movk_i32 s35, 3584\nv_mul_lo_u32 v70, s35, v65\ns_lshl_b32 s35, s68, 6\nv_add3_u32 v70, v70, v66, s35")
    srd(40, 16, 512 * 3584); tile_load(128, 70, 3584)
    A("s_branch L_cl\nL_ldwo:")
    A("s_lshr_b32 s35, s34, 4\ns_lshl_b32 s35, s35, 19"); srd(40, 12, 512 * 1024, "s35")
    A("s_and_b32 s35, s49, 0x3ff\nv_lshlrev_b32 v70, 10, v65\nv_add3_u32 v70, v70, v66, s35")
    tile_load(128, 70, 1024)
    A("s_branch L_cl")
    A("L_ev2:\ns_waitcnt vmcnt(0)")
    MW = tile_tr(128, 127)
    A("s_cmp_ge_u32 s68, 56\ns_cbranch_scc1 L_cl")
    srd(40, 18, 512 * 3584); tile_load(160, 70, 3584)
    A("s_branch L_cl")
    A("L_ev3:\ns_cmp_ge_u32 s68, 56\ns_cbranch_scc1 L_cl\ns_waitcnt vmcnt(0)")
    MU = tile_tr(160, 126)
    A("s_lshl_b32 s35, s68, 15"); srd(40, 20, 32 * 1024, "s35")
    A("v_lshrrev_b32 v70, 4, v0\nv_lshlrev_b32 v70, 13, v70\nv_and_b32 v71, 15, v0\nv_lshl_add_u32 v70, v71, 4, v70\ns_lshl_b32 s35, s33, 8\nv_add_u32 v70, s35, v70")
    tile_load(192, 70, 1024)
    A("s_branch L_cl")
    A("L_ev4:\ns_mov_b32 s57, -1")
    if tp & 2: touch("L_t2")
    A("s_cmp_ge_u32 s68, 56\ns_cbranch_scc1 L_dry\ns_waitcnt vmcnt(0)")
    MD = tile_tr(192, 125)
    A("global_load_dword v76, v111, s[4:5]")
    A("s_lshl_b32 s35, s68, 2\ns_add_u32 s35, s35, s33\ns_lshl_b32 s90, s35, 4\ns_lshl_b32 s35, s35, 2\nv_lshrrev_b32 v116, 4, v0\nv_add_u32 v116, s35, v116")
    A("v_and_b32 v116, 0x1ff, v116\nv_lshrrev_b32 v117, 1, v116\nv_lshlrev_b32 v117, 3, v117")
    def l3():
        A(f"s_mov_b32 s48, {MODG+2*2048}\nbuffer_load_dwordx2 v[84:85], v110, s[36:39], s48 offen sc1\nbuffer_load_dwordx2 v[86:87], v110, s[36:39], s48 offen offset:2048 sc1")
        A(f"s_mov_b32 s48, {MODG+4*2048}\nbuffer_load_dwordx2 v[88:89], v110, s[36:39], s48 offen sc1")
        A(f"s_mov_b32 s48, {MODG+5*2048}\nbuffer_load_dwordx2 v[108:109], v117, s[36:39], s48 offen sc1")
    if not x & 8: poll(l3, lambda: chk_tags([85, 87, 89, 109], 100), 8)
    for r in (84, 86, 88, 76): unpack(r, r + 1, r)
    A("v_add_f32 v88, 1.0, v88\nv_add_f32 v89, 1.0, v89"); rndn([88, 89])
    unpack(109, 108, 108)
    A("v_and_b32 v117, 1, v116\nv_cmp_eq_u32 vcc, 1, v117\nv_cndmask_b32 v108, v109, v108, vcc\nv_lshlrev_b32 v116, 1, v116")
    if tch: A("buffer_load_ushort v117, v116, s[60:63], 0 offen")
    A("L_dry:")
    if dry:
        for r in (24, 25, 26, 28, 29, 30, 31): A(f"v_mov_b32 v{r}, 0")
    A("s_mov_b64 s[66:67], 0\ns_mov_b64 exec, 0" if dry else "s_branch L_cl")
    A("L_finish:")
    A("v_mov_b32 v26, v18"); xrows("v_min_f32", [(26, 24)])
    A("v_sub_f32 v24, v26, v18\nv_exp_f32 v24, v24")
    A("v_mov_b32 v23, 1\nv_lshl_add_u32 v28, v19, 7, v115")
    for j in range(4): A(f"v_pk_mul_f32 v[{8+2*j}:{9+2*j}], v[{8+2*j}:{9+2*j}], v[24:25] op_sel_hi:[1,0]")
    A("v_mul_f32 v27, v16, v24\nv_lshlrev_b32 v29, 1, v19")
    halve([list(range(8, 16))]); xrows("v_add_f32", [(27, 24)])
    A(f"ds_write_b64 v28, v[8:9] offset:{LPO}\nds_write_b64 v29, v[26:27] offset:{LML}")
    def rdp():
        for k in range(2): A(f"ds_read_b128 v[{32+4*k}:{35+4*k}], v3 offset:{LML+16*k}")
        for k in range(4): A(f"ds_read_b64 v[{48+2*k}:{49+2*k}], v119 offset:{LPO+512*k}")
    assert not pm & 1
    arrive(1, 4, "L_notlast", rdp, 6)
    A(f"s_lshl_b32 s48, s2, 10\ns_add_u32 s48, s48, {PART}\ns_waitcnt lgkmcnt(4)")
    A("v_min3_f32 v26, v32, v34, v36\nv_min_f32 v26, v26, v38")
    for k in range(4): A(f"v_sub_f32 v{32+2*k}, v26, v{32+2*k}")
    for k in range(4): A(f"v_exp_f32 v{32+2*k}, v{32+2*k}")
    A("s_waitcnt lgkmcnt(0)\nv_mul_f32 v27, v32, v33\nv_pk_mul_f32 v[28:29], v[48:49], v[32:33] op_sel_hi:[1,0]")
    for k in range(1, 4):
        A(f"v_fmac_f32 v27, v{32+2*k}, v{33+2*k}\nv_pk_fma_f32 v[28:29], v[{48+2*k}:{49+2*k}], v[{32+2*k}:{33+2*k}], v[28:29] op_sel_hi:[1,0,1]")
    for r in (28, 29, 26, 27): A(f"v_min_u32 v{r}, -2, v{r}")
    A("buffer_store_dwordx2 v[28:29], v119, s[36:39], s48 offen sc1")
    A("s_and_b64 exec, 1, s[66:67]\nbuffer_store_dwordx2 v[26:27], off, s[36:39], s48 offset:512 sc1\ns_mov_b64 exec, s[66:67]")
    A("L_notlast:\ns_waitcnt lgkmcnt(0)")
    ST(4)
    A("s_cmp_lt_u32 s68, 56\ns_cbranch_scc1 L_ffn\ns_cmp_ge_u32 s69, 4\ns_cbranch_scc1 L_end")
    A(f"s_lshr_b32 s35, s34, 4\ns_lshl_b32 s35, s35, 2\ns_add_u32 s35, s35, s33\ns_lshl_b32 s35, s35, 13\ns_add_u32 s48, s35, {PART}")
    A(f"v_lshlrev_b32 v30, 7, v66\nv_and_b32 v31, {'0xff, v69' if pm & 1 else '0x1ff, v68'}\nv_add_u32 v31, v31, v30")
    def la():
        for p in range(2):
            A(f"buffer_load_dwordx2 v[{240+2*p}:{241+2*p}], v30, s[36:39], s48 offen offset:{1024*p+512} sc1")
            for h in range(2): A(f"buffer_load_dwordx4 v[{224+8*p+4*h}:{227+8*p+4*h}], v31, s[36:39], s48 offen offset:{1024*p+(256 if pm & 1 else 16)*h} sc1")
    poll2(la, 6, lambda: chk_sent(list(range(224, 244)), 24), wsl, dp & 3)
    ST(5)
    A("v_min_f32 v24, v240, v242"); quad("v_min_f32", [24])
    A("v_sub_f32 v48, v24, v240\nv_sub_f32 v50, v24, v242\nv_exp_f32 v48, v48\nv_exp_f32 v50, v50")
    A("v_mul_f32 v24, v48, v241\nv_fmac_f32 v24, v50, v243")
    for j in range(4): A(f"v_pk_mul_f32 v[{32+2*j}:{33+2*j}], v[{224+2*j}:{225+2*j}], v[48:49] op_sel_hi:[1,0]")
    for j in range(4): A(f"v_pk_fma_f32 v[{32+2*j}:{33+2*j}], v[{232+2*j}:{233+2*j}], v[50:51], v[{32+2*j}:{33+2*j}] op_sel_hi:[1,0,1]")
    quad("v_add_f32", [24] + list(range(32, 40)))
    A("v_rcp_f32 v24, v24")
    for j in range(4): A(f"v_pk_mul_f32 v[{32+2*j}:{33+2*j}], v[{32+2*j}:{33+2*j}], v[24:25] op_sel_hi:[1,0]")
    for j in range(4): A(f"v_cvt_pk_bf16_f32 v{72+j}, v{32+2*j}, v{33+2*j}")
    tile_dot(MW, 72, 8)
    gemv_tail(8, 2, "L_end")
    A(f"v_min_u32 v26, -2, v26\nv_min_u32 v27, -2, v27\ns_lshl_b32 s48, s34, 7\ns_add_u32 s48, s48, {YP}")
    if pm & 2: A("s_and_b32 s35, s49, 0x3ff\ns_sub_u32 s48, s48, s35")
    A(("" if rp else "s_and_b64 exec, 0xffff, s[66:67]\n") + "buffer_store_dwordx2 v[26:27], v120, s[36:39], s48 offen sc1")
    ST(6)
    A("s_branch L_end")
    A(f"L_ffn:\ns_mov_b32 s48, {YP}\nv_lshl_add_u32 v31, v66, 8, {'v69' if pm & 2 else 'v68'}")
    if rp: A(f"s_bfe_u32 s35, s68, {0x20000 + rsh}\ns_lshl_b32 s35, s35, 14\ns_add_u32 s48, s48, s35")
    if alt:
        A(f"s_xor_b32 s35, s48, {ax << 14}")
        for r in range(240, 256): A(f"v_mov_b32 v{r}, -1")
    if pa:
        A(f"s_and_b64 exec, 15, s[66:67]\nL_pa:\nbuffer_load_dword v32, v31, s[36:39], s48 offen sc1\ns_sub_u32 s59, s59, 1\ns_cbranch_scc1 L_end\ns_waitcnt vmcnt(0)")
        A(f"v_cmp_ne_u32 vcc, -1, v32\ns_cbranch_vccnz L_pad\ns_cbranch_execz L_pad\ns_sleep {asl}\ns_branch L_pa\nL_pad:\ns_mov_b64 exec, s[66:67]")
    for k in range(4): A(f"s_add_u32 s{44+k}, s48, {4096*k}")
    A(f"s_lshl_b32 s48, s68, 11\ns_lshl_b32 s35, s33, 9\ns_add_u32 s48, s48, s35\ns_add_u32 s48, s48, {DP}\nv_lshlrev_b32 v31, 11, v0")
    def lb():
        for k in range(8): A(f"buffer_load_dwordx2 v[{224+2*k}:{225+2*k}], v110, s[36:39], s{44+k//2} offen offset:{2048*(k&1)} sc1")
    poll(lb, lambda: chk_sent(list(range(224, 240)), 24), fsl)
    ST(5)
    for d, a_, b_ in ((224, 224, 226), (228, 228, 230), (232, 232, 234), (236, 236, 238), (224, 224, 228), (232, 232, 236), (32, 224, 232)):
        A(f"v_pk_add_f32 v[{d}:{d+1}], v[{a_}:{a_+1}], v[{b_}:{b_+1}]")
    def mod2(x_, c_, s_, o_):
        A(f"v_pk_mul_f32 v[{x_}:{x_+1}], v[{x_}:{x_+1}], v[{c_}:{c_+1}]"); rndn([x_, x_ + 1])
        A(f"v_pk_add_f32 v[{x_}:{x_+1}], v[{x_}:{x_+1}], v[{s_}:{s_+1}]\nv_cvt_pk_bf16_f32 v{o_}, v{x_}, v{x_+1}")
    rndn([32, 33]); mod2(32, 84, 76, 77)
    A(f"ds_write_b32 v111, v77 offset:{LX2}")
    A(f"s_waitcnt lgkmcnt(0)\ns_cbranch_execz L_nb1\ns_barrier\nL_nb1:\nds_read_b128 v[32:35], v1 offset:{LX2}\nds_read_u16 v109, v116 offset:{LX2}")
    unpack(76, 77, 77)
    A("s_waitcnt lgkmcnt(1)")
    ln_stats(32, 36, 46, 47)
    A("v_sub_f32 v76, v76, v46\nv_sub_f32 v77, v77, v46"); rndn([76, 77])
    A("v_mul_f32 v76, v76, v47\nv_mul_f32 v77, v77, v47"); rndn([76, 77])
    mod2(76, 88, 86, 76)
    for k in range(4): A(f"v_mov_b32_dpp v{72+k}, v76 quad_perm:[{k},{k},{k},{k}] {DPP}")
    tile_dot(MW, 72, 8); tile_dot(MU, 72, 16)
    halve([list(range(8, 16)), list(range(16, 24))]); ror("v_add_f32", [8, 9, 16, 17], [8, 4])
    A(f"ds_write_b64 v67, v[8:9] offset:{LRED}\nds_write_b64 v67, v[16:17] offset:{LRED+512}")
    A("s_waitcnt lgkmcnt(0)\ns_cbranch_execz L_nb2\ns_barrier\nL_nb2:")
    for k in range(4): A(f"ds_read2st64_b32 v[{32+2*k}:{33+2*k}], v{113 if k % 2 == 0 else 122} offset0:{LRED//256 + k//2} offset1:{LRED//256 + k//2 + 2}")
    A("s_waitcnt lgkmcnt(0)\nv_pk_add_f32 v[32:33], v[32:33], v[34:35]\nv_pk_add_f32 v[36:37], v[36:37], v[38:39]\nv_pk_add_f32 v[32:33], v[32:33], v[36:37]")
    rndn([32, 33])
    A("v_mul_f32 v34, v32, v32\nv_mul_f32 v34, 0x3d372713, v34\nv_fma_f32 v34, v34, v32, v32\nv_mul_f32 v34, 0xc0135761, v34")
    A("v_exp_f32 v34, v34\nv_add_f32 v34, 1.0, v34\nv_rcp_f32 v34, v34\nv_mul_f32 v34, v34, v32"); rnd1(34)
    A(f"v_mul_f32 v34, v34, v33\nv_cvt_pk_bf16_f32 v34, v34, v34\nds_write_b16 v112, v34 offset:{LA}\nds_read_b128 v[72:75], v114 offset:{LA}")
    A("s_waitcnt lgkmcnt(0)")
    tile_dot(MD, 72, 8)
    halve([list(range(8, 16))])
    A("v_min_u32 v8, -2, v8\nv_min_u32 v9, -2, v9\nbuffer_store_dwordx2 v[8:9], v115, s[36:39], s48 offen sc1")
    ST(6)
    A(f"s_cmp_ge_u32 s68, 32\ns_cbranch_scc1 L_end\ns_add_u32 s48, s90, {DP}")
    poll(lambda: A("buffer_load_dwordx4 v[32:35], v31, s[36:39], s48 offen sc1"), lambda: chk_sent([32, 33, 34, 35], 24), zsl)
    ST(7)
    halve([[32, 33, 34, 35]]); ror("v_add_f32", [32], [8, 4, 2, 1]); rnd1(32)
    A("v_mul_f32 v32, v32, v108"); rnd1(32)
    A("v_lshlrev_b32 v109, 16, v109\nv_add_f32 v32, v32, v109\nv_cvt_pk_bf16_f32 v32, v32, v32")
    A("s_and_b64 exec, s[64:65], s[66:67]\nbuffer_store_short v32, v116, s[60:63], 0 offen")
    A("s_or_b32 s35, s68, s33\ns_cbranch_scc1 L_end\ns_and_b64 exec, 1, s[66:67]\nv_mov_b32 v24, s32\nbuffer_store_dword v24, off, s[36:39], 0 sc1")
    A("L_end:")
    if dry: A("s_cmp_lg_u32 s66, 0\ns_cbranch_scc1 L_fin\ns_mov_b64 s[66:67], -1\ns_mov_b64 exec, -1\ns_branch L_cl\nL_fin:")
    if stamp:
        ST(8)
        A("s_mov_b64 exec, 1\ns_add_u32 s30, s30, 0x8000000\ns_addc_u32 s31, s31, 0\ns_lshl_b32 s35, s2, 3\ns_add_u32 s35, s35, s3\ns_lshl_b32 s35, s35, 7\nv_mov_b32 v3, s35\ns_waitcnt lgkmcnt(0)")
        for i in range(9): A(f"v_mov_b32 v4, s{70+2*i}\nv_mov_b32 v5, s{71+2*i}\nglobal_store_dwordx2 v3, v[4:5], s[30:31] offset:{8*i}")
    A("L_exit:\ns_endpgm")
    post = f""".section .rodata,"a"
.p2align 6
.amdhsa_kernel {NAME}_kernel
  .amdhsa_next_free_vgpr 256
  .amdhsa_next_free_sgpr 102
  .amdhsa_accum_offset 256
  .amdhsa_group_segment_fixed_size 0
  .amdhsa_kernarg_size 112
  .amdhsa_user_sgpr_count 2
  .amdhsa_user_sgpr_kernarg_segment_ptr 1
  .amdhsa_system_sgpr_workgroup_id_x 1
  .amdhsa_float_denorm_mode_32 3
.end_amdhsa_kernel
"""
    t = A.text(); i = t.index("L_finish:")
    import re
    u = re.sub(r"(buffer_store.*) sc1", lambda m: m.group(1) + " " + hs, t[i:]); u = re.sub(r"(buffer_load.*) sc1", lambda m: m.group(1) + " " + hl, u)
    return pre + t[:i] + u + post
if __name__ == "__main__":
    out = sys.argv[1]
    kw = {}
    for a in sys.argv[2:]:
        k, v = a.split("=")
        kw[k] = int(v) if v.lstrip("-").isdigit() else v
    open(out, "w").write(gen(**kw))
```
